```python
import torch

def _softmax(x, axis=-1):
    return torch.softmax(x, dim=axis)
def _gelu(x):
    return torch.nn.functional.gelu(x, approximate="tanh")
def _silu(x):
    return torch.nn.functional.silu(x)
def _sigmoid(x):
    return torch.sigmoid(x)
def _layernorm(x, axis=-1, eps=1e-5):
    m = x.mean(dim=axis, keepdim=True)
    v = x.var(dim=axis, keepdim=True, unbiased=False)
    return (x - m) / torch.sqrt(v + eps)
def _scatter_add(tgt, idx, src, axis=0):
    return tgt.clone().index_add_(axis, idx, src)
def _segment_sum(src, seg, n):
    out = torch.zeros((n,) + src.shape[1:], dtype=src.dtype)
    return out.index_add_(0, seg, src)
def _pad(x, pw):
    flat = tuple(v for pair in reversed(pw) for v in pair)
    return torch.nn.functional.pad(x, flat)

kernel_name = 'gather_scatter__molecular_angular_gemnet__graph'

def setup_inputs():

    _w = (lambda a: (lambda t: t.to(torch.bfloat16) if t.is_floating_point() else t)(torch.as_tensor(a)))
    N, deg, De, L = 10000, 16, 4, 3
    E = N * deg
    T = E * deg
    NR = 8
    dist = torch.rand(E).to(float)
    angle = (torch.rand(T) * torch.pi).to(float)
    centers = torch.linspace(0.0, 1.0, NR).to(float)
    ang_freq = torch.arange(1, L + 1).to(float)
    return {
        "m": _w((lambda *s: torch.randn(*s, dtype=torch.bfloat16) * 0.05)(E, De)),
        "idx_in": _w((lambda lo, hi, *s: torch.randint(lo, hi, s))(0, E, T).to(torch.int64)),
        "idx_out": _w((lambda lo, hi, *s: torch.randint(lo, hi, s))(0, E, T).to(torch.int64)),
        "dist": _w(dist),
        "angle": _w(angle),
        "centers": _w(centers),
        "ang_freq": _w(ang_freq),
        "w_rbf": _w((lambda *s: torch.randn(*s, dtype=torch.bfloat16) * 0.2)(NR, De)),
        "w_sbf": _w((lambda *s: torch.randn(*s, dtype=torch.bfloat16) * 0.2)(NR * L, De)),
        "w_down": _w((lambda *s: torch.randn(*s, dtype=torch.bfloat16) * 0.2)(De, De)),
        "w_up": _w((lambda *s: torch.randn(*s, dtype=torch.bfloat16) * 0.2)(De, De)),
    }

def reference(m, idx_in, idx_out, dist, angle, centers, ang_freq, w_rbf, w_sbf, w_down, w_up):
    E, De = m.shape[0], m.shape[1]
    NR = centers.shape[0]
    L = ang_freq.shape[0]
    rbf = torch.exp(-10.0 * (dist[:, None] - centers[None, :]) ** 2)
    cbf = torch.cos(ang_freq[None, :] * angle[:, None])
    rbf_t = rbf[idx_out]
    sbf = torch.reshape(rbf_t[:, :, None] * cbf[:, None, :], (-1, NR * L))
    x = (m[idx_in] @ w_down) * (sbf @ w_sbf)
    agg = _segment_sum(x, idx_out, E)
    return m + (agg @ w_up) * (rbf @ w_rbf)
```

```python
import sys

E = 160000
T = 2560000
NB = 250
EPB = 640
CH = 10240
REC_OFF = 0
REC_BYTES = T * 8
OFFS_OFF = 0x1400000
OFFS_BYTES = NB * 1024
MD_OFF = 0x1500000
MD_BYTES = E * 8
WS_USED = MD_OFF + MD_BYTES
W3 = 0x00020000
BLK = 63
NSLOT = 17
D = 5
RING = D + 1

out = []
def e(s=""):
    out.append(s)
def I(s):
    out.append("    " + s)
def L(s):
    out.append(s + ":")

def vr(a, n=1):
    return f"v{a}" if n == 1 else f"v[{a}:{a+n-1}]"
def sr(a, n=1):
    return f"s{a}" if n == 1 else f"s[{a}:{a+n-1}]"

def srd(base, nbytes, add=0):
    if add:
        I(f"s_add_u32 s{base}, s{base}, {add:#x}")
        I(f"s_addc_u32 s{base+1}, s{base+1}, 0")
    I(f"s_mov_b32 s{base+2}, {nbytes}")
    I(f"s_mov_b32 s{base+3}, {W3:#x}")

def wave_scan(reg):
    for sh in (1, 2, 4, 8):
        I("s_nop 1")
        I(f"v_add_u32_dpp v{reg}, v{reg}, v{reg} row_shr:{sh} row_mask:0xf bank_mask:0xf bound_ctrl:0")
    I("s_nop 1")
    I(f"v_add_u32_dpp v{reg}, v{reg}, v{reg} row_bcast:15 row_mask:0xa bank_mask:0xf")
    I("s_nop 1")
    I(f"v_add_u32_dpp v{reg}, v{reg}, v{reg} row_bcast:31 row_mask:0xc bank_mask:0xf")

P1_CNT = 0
P1_OFF = 1024
P1_STAGE = 2048
P1_LDS = P1_STAGE + CH * 8

def p1(name):
    e(".p2align 8")
    e(f".type {name},@function")
    L(name)
    I(f"s_cmp_ge_u32 s2, {NB}")
    I(f"s_cbranch_scc1 {name}_end")
    I("s_load_dwordx2 s[8:9], s[0:1], 16")
    I("s_load_dwordx2 s[4:5], s[0:1], 8")
    I("s_load_dwordx2 s[12:13], s[0:1], 32")
    I("s_load_dwordx2 s[16:17], s[0:1], 0")
    I("s_load_dwordx2 s[20:21], s[0:1], 104")
    I("s_load_dwordx2 s[24:25], s[0:1], 72")
    vO, vI_, vA, vM, vB, vR, vW = 8, 18, 28, 34, 36, 46, 56
    vT = 76
    I("v_lshlrev_b32 v1, 4, v0")
    I("v_lshlrev_b32 v2, 3, v0")
    I("v_lshlrev_b32 v3, 2, v0")
    I("v_mov_b32 v4, 1")
    I("v_mov_b32 v5, 0")
    I("v_and_b32 v6, 0x3fc, v3")
    I(f"ds_write_b32 v6, v5 offset:{P1_CNT}")
    I("s_mul_i32 s40, s2, 40960")
    I("s_add_u32 s41, s40, 16384")
    I("s_add_u32 s42, s40, 32768")
    I("s_mul_i32 s43, s2, 20480")
    I("s_add_u32 s44, s43, 8192")
    I("s_add_u32 s45, s43, 16384")
    I("s_mul_i32 s46, s2, 5120")
    I(f"s_add_u32 s47, s46, {MD_OFF:#x}")
    I("s_mul_i32 s48, s2, 81920")
    for k in range(1, 5):
        I(f"s_add_u32 s{48+k}, s48, {16384*k}")
    I("s_lshl_b32 s53, s2, 10")
    I(f"s_add_u32 s53, s53, {OFFS_OFF:#x}")
    I("s_movk_i32 s54, 0xfd80")
    I("s_mov_b32 s10, 10240000")
    I(f"s_mov_b32 s11, {W3:#x}")
    I("s_mov_b32 s6, 10240000")
    I(f"s_mov_b32 s7, {W3:#x}")
    I("s_mov_b32 s14, 5120000")
    I(f"s_mov_b32 s15, {W3:#x}")
    I(f"s_mov_b32 s18, {E*8}")
    I(f"s_mov_b32 s19, {W3:#x}")
    I(f"s_mov_b32 s22, {WS_USED}")
    I(f"s_mov_b32 s23, {W3:#x}")
    I("s_waitcnt lgkmcnt(0)")
    I(f"buffer_load_dwordx4 {vr(vO,4)}, v1, s[8:11], s40 offen")
    I(f"buffer_load_dwordx4 {vr(vO+4,4)}, v1, s[8:11], s41 offen")
    I(f"buffer_load_dwordx2 {vr(vO+8,2)}, v2, s[8:11], s42 offen")
    I(f"buffer_load_dwordx2 {vr(vM,2)}, v2, s[16:19], s46 offen")
    I(f"buffer_load_dwordx4 {vr(vI_,4)}, v1, s[4:7], s40 offen")
    I(f"buffer_load_dwordx2 {vr(vA,2)}, v2, s[12:15], s43 offen")
    I(f"buffer_load_dwordx4 {vr(vI_+4,4)}, v1, s[4:7], s41 offen")
    I(f"buffer_load_dwordx2 {vr(vA+2,2)}, v2, s[12:15], s44 offen")
    I(f"buffer_load_dwordx2 {vr(vI_+8,2)}, v2, s[4:7], s42 offen")
    I(f"buffer_load_dword {vr(vA+4)}, v3, s[12:15], s45 offen")
    I("s_load_dwordx8 s[28:35], s[24:25], 0")
    I("s_barrier")
    for j in range(10):
        if j == 0: I("s_waitcnt vmcnt(9)")
        if j == 4: I("s_waitcnt vmcnt(8)")
        if j == 8: I("s_waitcnt vmcnt(7)")
        t = vT + (j % 4)
        I(f"v_lshrrev_b32 v{t}, 7, v{vO+j}")
        I(f"v_mul_u32_u24 v{t}, 0xcccd, v{t}")
        I(f"v_lshrrev_b32 v{t}, 18, v{t}")
        I(f"v_lshlrev_b32 v{vB+j}, 2, v{t}")
        I(f"v_mad_i32_i24 v{t}, v{t}, s54, v{vO+j}")
        I(f"ds_add_rtn_u32 v{vR+j}, v{vB+j}, v4 offset:{P1_CNT}")
        I(f"v_lshlrev_b32 v{vO+j}, 21, v{t}")
    I("s_waitcnt lgkmcnt(0)")
    I("s_barrier")
    c = 80
    o = 84
    I("v_and_b32 v6, 63, v0")
    I("v_lshlrev_b32 v6, 4, v6")
    I(f"ds_read_b128 {vr(c,4)}, v6 offset:{P1_CNT}")
    I("s_waitcnt lgkmcnt(0)")
    I(f"v_add_u32 v{o+2}, v{c}, v{c+1}")
    I(f"v_add_u32 v{o+3}, v{o+2}, v{c+2}")
    I(f"v_add_u32 v88, v{o+3}, v{c+3}")
    I("v_mov_b32 v89, v88")
    wave_scan(89)
    I(f"v_sub_u32 v{o}, v89, v88")
    I(f"v_add_u32 v{o+1}, v{o}, v{c}")
    I(f"v_add_u32 v{o+2}, v{o}, v{o+2}")
    I(f"v_add_u32 v{o+3}, v{o}, v{o+3}")
    I(f"ds_write_b128 v6, {vr(o,4)} offset:{P1_OFF}")
    for j in range(10):
        I(f"ds_read_b32 v{vB+j}, v{vB+j} offset:{P1_OFF}")
    I("v_cmp_gt_u32 vcc, 64, v0")
    I("s_and_saveexec_b64 s[56:57], vcc")
    I(f"s_cbranch_execz {name}_noff")
    I(f"buffer_store_dwordx4 {vr(o,4)}, v6, s[20:23], s53 offen")
    L(f"{name}_noff")
    I("s_mov_b64 exec, s[56:57]")
    for j in range(10):
        g = 0 if j < 4 else (1 if j < 8 else 2)
        if j == 0:
            I("s_waitcnt vmcnt(4)")
        if j == 4: I("s_waitcnt vmcnt(2)")
        if j == 8: I("s_waitcnt vmcnt(0)")
        jj = j - (0, 4, 8)[g]
        areg = vA + (0, 2, 4)[g] + jj // 2
        t = vT + (j % 4)
        if jj % 2 == 0:
            I(f"v_lshlrev_b32 v{t}, 16, v{areg}")
        else:
            I(f"v_and_b32 v{t}, 0xffff0000, v{areg}")
        I(f"v_mul_f32 v{t}, 0.15915494, v{t}")
        I(f"v_fract_f32 v{t}, v{t}")
        I(f"v_cos_f32 v{vW+2*j+1}, v{t}")
        I(f"v_lshl_or_b32 v{vW+2*j}, v{vI_+j}, 3, v{vO+j}")
        if j == 0:
            I("s_waitcnt lgkmcnt(0)")
        I(f"v_add_lshl_u32 v{vB+j}, v{vB+j}, v{vR+j}, 3")
        I(f"ds_write_b64 v{vB+j}, {vr(vW+2*j,2)} offset:{P1_STAGE}")
    for dd in range(2):
        I(f"s_pack_ll_b32_b16 s{58+4*dd+0}, s{28+dd}, s{30+dd}")
        I(f"s_pack_ll_b32_b16 s{58+4*dd+1}, s{32+dd}, s{34+dd}")
        I(f"s_pack_hh_b32_b16 s{58+4*dd+2}, s{28+dd}, s{30+dd}")
        I(f"s_pack_hh_b32_b16 s{58+4*dd+3}, s{32+dd}, s{34+dd}")
    for d in range(4):
        I(f"v_dot2_f32_bf16 v{vT+d}, v{vM}, s{58+2*d}, 0")
    for d in range(4):
        I(f"v_dot2c_f32_bf16 v{vT+d}, s{58+2*d+1}, v{vM+1}")
    I("s_nop 2")
    I(f"v_cvt_pk_bf16_f32 v{vT+4}, v{vT}, v{vT+1}")
    I(f"v_cvt_pk_bf16_f32 v{vT+5}, v{vT+2}, v{vT+3}")
    I(f"v_cmp_gt_u32 vcc, {EPB}, v0")
    I("s_and_saveexec_b64 s[56:57], vcc")
    I(f"s_cbranch_execz {name}_nomd")
    I(f"buffer_store_dwordx2 {vr(vT+4,2)}, v2, s[20:23], s47 offen")
    L(f"{name}_nomd")
    I("s_mov_b64 exec, s[56:57]")
    I("s_waitcnt lgkmcnt(0)")
    I("s_barrier")
    I("v_add_u32 v6, 0x10000, v1")
    for k in range(5):
        if k < 4:
            I(f"ds_read_b128 {vr(vW+4*k,4)}, v1 offset:{P1_STAGE+16384*k}")
        else:
            I(f"ds_read_b128 {vr(vW+4*k,4)}, v6 offset:{P1_STAGE}")
    for k in range(5):
        I(f"s_waitcnt lgkmcnt({4-k})")
        I(f"buffer_store_dwordx4 {vr(vW+4*k,4)}, v1, s[20:23], s{48+k} offen")
    L(f"{name}_end")
    I("s_endpgm")

P2_CNT = 0
P2_FLAG = EPB * 4
P2_GA = 2576
P2_GB = P2_GA + EPB * 16
P2_PAY = P2_GB + EPB * 16
P2_CAP = NB * BLK + 16 * BLK + EPB
P2_LDS = P2_PAY + P2_CAP * 8
assert P2_PAY % 16 == 0 and P2_LDS <= 163840, P2_LDS

def p2(name):
    e(".p2align 8")
    e(f".type {name},@function")
    L(name)
    sREC, sMD, sOFF, sM, sDIST, sOUT = 4, 8, 12, 16, 20, 24
    sN = 28
    sBase, sFav, sT0 = 45, 46, 47
    sW = 48
    sT1, sT2 = 98, 99
    sMore = 96
    vLane, vLane8, vOne = 1, 2, 3
    vM, vGate, vAcc, vN2, vBase = 4, 6, 8, 12, 13
    vREC = 14
    vRK = 48
    vMD = 66
    vGS = 78
    vT = 94
    vO = 104
    vRem, vN, vSoff, vL16, vRO, vRunBase = 106, 107, 108, 109, 110, 111
    vTid4, vTid16, vDist = 112, 113, 114
    I(f"s_cmp_ge_u32 s2, {NB}")
    I(f"s_cbranch_scc1 {name}_end")
    I(f"s_load_dwordx2 s[{sREC}:{sREC+1}], s[0:1], 104")
    I(f"s_load_dwordx2 s[{sMD}:{sMD+1}], s[0:1], 104")
    I(f"s_load_dwordx2 s[{sOFF}:{sOFF+1}], s[0:1], 104")
    I(f"s_load_dwordx2 s[{sM}:{sM+1}], s[0:1], 0")
    I(f"s_load_dwordx2 s[{sDIST}:{sDIST+1}], s[0:1], 24")
    I("s_load_dwordx4 s[96:99], s[0:1], 56")
    I("s_load_dwordx2 s[46:47], s[0:1], 40")
    I("s_load_dwordx2 s[100:101], s[0:1], 80")
    I(f"v_lshlrev_b32 v{vTid4}, 2, v0")
    I(f"v_lshlrev_b32 v{vTid16}, 4, v0")
    I(f"v_mov_b32 v{vT}, 0")
    I(f"v_cmp_gt_u32 vcc, {EPB+4}, v0")
    I("s_mov_b64 exec, vcc")
    I(f"ds_write_b32 v{vTid4}, v{vT} offset:{P2_CNT}")
    I("s_mov_b64 exec, -1")
    I(f"v_and_b32 v{vLane}, 63, v0")
    I(f"v_lshlrev_b32 v{vLane8}, 3, v{vLane}")
    I(f"v_mov_b32 v{vOne}, 1")
    I(f"v_lshrrev_b32 v{vT}, 6, v0")
    I(f"v_and_b32 v{vL16}, 15, v0")
    I(f"v_readfirstlane_b32 s3, v{vT}")
    for i in range(4):
        I(f"v_mov_b32 v{vAcc+i}, 0")
    I(f"v_lshl_add_u32 v{vT+1}, v{vT}, 4, v{vL16}")
    I(f"v_lshlrev_b32 v{vRO}, 10, v{vT+1}")
    I(f"s_lshl_b32 s{sT0+0}, s2, 2") if False else None
    I(f"v_mul_u32_u24 v{vRunBase}, 0x14000, v{vT+1}")
    I(f"v_lshl_add_u32 v{vRO}, s2, 2, v{vRO}")
    I(f"v_lshlrev_b32 v{vT+2}, 3, v0")
    I(f"v_lshlrev_b32 v{vT+3}, 1, v0")
    I("s_mul_i32 s28, s2, 5120")
    I("s_mul_i32 s29, s2, 1280")
    I("s_waitcnt lgkmcnt(0)")
    srd(sREC, REC_BYTES, REC_OFF)
    srd(sMD, MD_BYTES, MD_OFF)
    srd(sOFF, OFFS_BYTES, OFFS_OFF)
    srd(sM, E * 8)
    srd(sDIST, E * 2)
    I(f"buffer_load_ushort v{vDist}, v{vT+3}, s[{sDIST}:{sDIST+3}], s29 offen")
    I(f"buffer_load_dwordx2 {vr(vM,2)}, v{vT+2}, s[{sM}:{sM+3}], s28 offen")
    I(f"s_load_dwordx16 s[{sW}:{sW+15}], s[98:99], 0")
    I(f"s_load_dwordx16 s[{sW+16}:{sW+31}], s[98:99], 64")
    I(f"s_load_dwordx16 s[{sW+32}:{sW+47}], s[98:99], 128")
    I("s_load_dwordx4 s[24:27], s[46:47], 0")
    I(f"s_mov_b32 s{sBase}, 0")
    I(f"s_mov_b32 s{sFav}, -1")
    I("s_barrier")
    L(f"{name}_round")
    I(f"buffer_load_dwordx2 {vr(vO,2)}, v{vRO}, s[{sOFF}:{sOFF+3}], 0 offen")
    I(f"v_cmp_eq_u32 vcc, s{sFav}, v{vL16}")
    I(f"v_mov_b32 v{vT}, s{sBase}")
    I("s_nop 0")
    I(f"v_cndmask_b32_e64 v{vT+1}, 0, {BLK}, vcc")
    I(f"v_add_u32 v{vT}, v{vT}, v{vT+1}")
    I("s_waitcnt vmcnt(0)")
    I(f"v_sub_u32 v{vRem}, v{vO+1}, v{vO}")
    I(f"v_add_u32 v{vT+1}, v{vO}, v{vT}")
    I(f"v_sub_u32 v{vRem}, v{vRem}, v{vT}")
    I(f"v_lshl_add_u32 v{vSoff}, v{vT+1}, 3, v{vRunBase}")
    I(f"v_med3_i32 v{vN}, v{vRem}, 0, {BLK}")
    I("s_nop 0")
    for s in range(16):
        I(f"v_add_u32_dpp v{vREC+2*s}, v{vSoff}, v{vLane8} row_newbcast:{s} row_mask:0xf bank_mask:0xf")
        I(f"v_readlane_b32 s{sN+s}, v{vN}, {s}")
    for s in range(16):
        I(f"s_bfm_b64 exec, s{sN+s}, 0")
        I(f"buffer_load_dwordx2 {vr(vREC+2*s,2)}, v{vREC+2*s}, s[{sREC}:{sREC+3}], 0 offen")
    I("s_mov_b64 exec, -1")
    I(f"s_mov_b32 s{sN+16}, 0")
    I(f"s_mov_b32 s{sT0}, 0")
    I(f"v_cmp_lt_i32 vcc, {BLK}, v{vRem}")
    I(f"s_cmp_lg_u32 s{sBase}, 0")
    I(f"s_cbranch_scc1 {name}_no16")
    I("s_and_b64 vcc, vcc, 0xffff")
    I(f"s_cbranch_scc0 {name}_no16")
    I(f"s_ff1_i32_b64 s{sFav}, vcc")
    I(f"v_readlane_b32 s{sN+16}, v{vRem}, s{sFav}")
    I(f"v_readlane_b32 s{sT0}, v{vSoff}, s{sFav}")
    I(f"v_cmp_eq_u32 vcc, s{sFav}, v{vL16}")
    I(f"s_sub_u32 s{sN+16}, s{sN+16}, {BLK}")
    I(f"s_min_u32 s{sN+16}, s{sN+16}, {BLK}")
    I(f"v_cndmask_b32_e64 v{vT+1}, 0, {BLK}, vcc")
    I(f"s_add_u32 s{sT0}, s{sT0}, {BLK*8}")
    I(f"v_sub_u32 v{vRem}, v{vRem}, v{vT+1}")
    L(f"{name}_no16")
    I(f"v_add_u32 v{vREC+32}, s{sT0}, v{vLane8}")
    I(f"v_cmp_lt_i32 vcc, {BLK}, v{vRem}")
    I(f"s_bfm_b64 exec, s{sN+16}, 0")
    I(f"buffer_load_dwordx2 {vr(vREC+32,2)}, v{vREC+32}, s[{sREC}:{sREC+3}], 0 offen")
    I("s_mov_b64 exec, -1")
    I("s_and_b64 vcc, vcc, 0xffff")
    I(f"s_cbranch_scc0 {name}_nomore")
    I(f"v_mov_b32 v{vT}, {P2_FLAG}")
    I(f"ds_write_b32 v{vT}, v{vOne}")
    L(f"{name}_nomore")
    I(f"s_cmp_lg_u32 s{sBase}, 0")
    I(f"s_cbranch_scc1 {name}_nopro")
    I("s_cmp_ge_u32 s3, 10")
    I(f"s_cbranch_scc1 {name}_nopro")
    g = 48
    vRB = g
    vG = g + 4
    vE = g + 16
    I("s_waitcnt lgkmcnt(0)")
    I(f"v_lshlrev_b32 v{vDist}, 16, v{vDist}")
    for p in range(4):
        a, b_, pk = vE + 4*p, vE + 4*p + 1, vE + 4*p + 2
        I(f"s_lshl_b32 s{sT1}, s{24+p}, 16")
        I(f"s_and_b32 s{sT2}, s{24+p}, 0xffff0000")
        I(f"v_subrev_f32 v{a}, s{sT1}, v{vDist}")
        I(f"v_subrev_f32 v{b_}, s{sT2}, v{vDist}")
        I(f"v_cvt_pk_bf16_f32 v{pk}, v{a}, v{b_}")
        I(f"v_lshlrev_b32 v{a}, 16, v{pk}")
        I(f"v_and_b32 v{b_}, 0xffff0000, v{pk}")
        I(f"v_mul_f32 v{a}, v{a}, v{a}")
        I(f"v_mul_f32 v{b_}, v{b_}, v{b_}")
        I(f"v_cvt_pk_bf16_f32 v{pk}, v{a}, v{b_}")
        I(f"v_lshlrev_b32 v{a}, 16, v{pk}")
        I(f"v_and_b32 v{b_}, 0xffff0000, v{pk}")
        I(f"v_mul_f32 v{a}, 0xc1200000, v{a}")
        I(f"v_mul_f32 v{b_}, 0xc1200000, v{b_}")
        I(f"v_cvt_pk_bf16_f32 v{pk}, v{a}, v{b_}")
        I(f"v_lshlrev_b32 v{a}, 16, v{pk}")
        I(f"v_and_b32 v{b_}, 0xffff0000, v{pk}")
        I(f"v_mul_f32 v{a}, 0x3fb8aa3b, v{a}")
        I(f"v_mul_f32 v{b_}, 0x3fb8aa3b, v{b_}")
        I(f"v_exp_f32 v{a}, v{a}")
        I(f"v_exp_f32 v{b_}, v{b_}")
        I("s_nop 0")
        I(f"v_cvt_pk_bf16_f32 v{vRB+p}, v{a}, v{b_}")
    tmps = [sT0, sT1, sT2]
    ti = 0
    for p in range(4):
        for l in range(3):
            for dd in range(2):
                A = sW + (6*p + l) * 2 + dd
                B = sW + (6*p + 3 + l) * 2 + dd
                for hi in range(2):
                    d = 2*dd + hi
                    t = tmps[ti % 3]; ti += 1
                    I(f"s_pack_{'hh' if hi else 'll'}_b32_b16 s{t}, s{A}, s{B}")
                    if p == 0:
                        I(f"v_dot2_f32_bf16 v{vG+4*l+d}, v{vRB+p}, s{t}, 0")
                    else:
                        I(f"v_dot2c_f32_bf16 v{vG+4*l+d}, s{t}, v{vRB+p}")
    I(f"s_load_dwordx16 s[{sW}:{sW+15}], s[96:97], 0")
    I(f"s_load_dwordx8 s[{sW+16}:{sW+23}], s[100:101], 0")
    pa = vE
    for d in range(4):
        I(f"v_cvt_pk_bf16_f32 v{pa+d}, v{vG+d}, v{vG+4+d}")
    I(f"v_cvt_pk_bf16_f32 v{pa+4}, v{vG+8}, v{vG+9}")
    I(f"v_cvt_pk_bf16_f32 v{pa+5}, v{vG+10}, v{vG+11}")
    I(f"ds_write_b128 v{vTid16}, {vr(pa,4)} offset:{P2_GA}")
    I(f"ds_write_b64 v{vTid16}, {vr(pa+4,2)} offset:{P2_GB}")
    I("s_waitcnt lgkmcnt(0)")
    for p in range(4):
        for dd in range(2):
            A = sW + (2*p) * 2 + dd
            B = sW + (2*p + 1) * 2 + dd
            for hi in range(2):
                d = 2*dd + hi
                t = tmps[ti % 3]; ti += 1
                I(f"s_pack_{'hh' if hi else 'll'}_b32_b16 s{t}, s{A}, s{B}")
                if p == 0:
                    I(f"v_dot2_f32_bf16 v{vG+d}, v{vRB+p}, s{t}, 0")
                else:
                    I(f"v_dot2c_f32_bf16 v{vG+d}, s{t}, v{vRB+p}")
    I("s_nop 2")
    I(f"v_cvt_pk_bf16_f32 v{vGate}, v{vG}, v{vG+1}")
    I(f"v_cvt_pk_bf16_f32 v{vGate+1}, v{vG+2}, v{vG+3}")
    for dd in range(2):
        I(f"s_pack_ll_b32_b16 s{88+4*dd+0}, s{64+dd}, s{66+dd}")
        I(f"s_pack_ll_b32_b16 s{88+4*dd+1}, s{68+dd}, s{70+dd}")
        I(f"s_pack_hh_b32_b16 s{88+4*dd+2}, s{64+dd}, s{66+dd}")
        I(f"s_pack_hh_b32_b16 s{88+4*dd+3}, s{68+dd}, s{70+dd}")
    L(f"{name}_nopro")
    I("s_waitcnt lgkmcnt(0)")
    I(f"s_load_dwordx2 s[{sOUT}:{sOUT+1}], s[0:1], 88")
    I(f"s_mov_b32 s{sOUT+2}, {E*8}")
    I(f"s_mov_b32 s{sOUT+3}, {W3:#x}")
    for s in range(NSLOT):
        t = vT + (s % 4)
        I(f"s_bfm_b64 exec, s{sN+s}, 0")
        I(f"s_waitcnt vmcnt({NSLOT-1-s})")
        I(f"v_lshrrev_b32 v{t}, 21, v{vREC+2*s}")
        I(f"v_lshlrev_b32 v{t}, 2, v{t}")
        I(f"ds_add_rtn_u32 v{vRK+s}, v{t}, v{vOne} offset:{P2_CNT}")
    def gather(q):
        t = vT + 8 + (q % 2)
        w0 = vREC + 2*q
        I(f"s_bfm_b64 exec, s{sN+q}, 0")
        I(f"v_and_b32 v{t}, 0x1fffff, v{w0}")
        I(f"buffer_load_dwordx2 {vr(vMD+2*(q%RING),2)}, v{t}, s[{sMD}:{sMD+3}], 0 offen")
        I(f"v_lshrrev_b32 v{w0}, 17, v{w0}")
        I(f"v_and_b32 v{w0}, 0x3ff0, v{w0}")
    for q in range(D):
        gather(q)
    I("s_mov_b64 exec, -1")
    I("s_waitcnt lgkmcnt(0)")
    I("s_barrier")
    I("s_cmp_lg_u32 s3, 0")
    I(f"s_cbranch_scc1 {name}_noscan")
    c = vGS
    ee = vT
    I(f"v_lshlrev_b32 v{vT}, 2, v{vLane}")
    for j in range(10):
        I(f"ds_read_b32 v{c+j}, v{vT} offset:{P2_CNT+256*j}")
    I(f"v_lshlrev_b32 v{vT+1}, 4, v{vLane}")
    I("s_waitcnt lgkmcnt(0)")
    for j in range(10):
        I(f"v_lshl_add_u32 v{c+j}, v{c+j}, 3, 8")
        I(f"v_and_b32 v{c+j}, -16, v{c+j}")
    I(f"v_mov_b32 v{vT+2}, 0")
    for j in range(10):
        I(f"v_add_u32 v{vT+3}, v{vT+2}, v{c+j}")
        I(f"v_mov_b32 v{c+j}, v{vT+2}")
        I(f"v_mov_b32 v{vT+2}, v{vT+3}")
    I(f"v_mov_b32 v{vT+3}, v{vT+2}")
    wave_scan(vT+3)
    I(f"v_sub_u32 v{vT+3}, v{vT+3}, v{vT+2}")
    I(f"v_add_u32 v{vT+3}, {P2_PAY}, v{vT+3}")
    for j in range(10):
        I(f"v_add_u32 v{c+j}, v{c+j}, v{vT+3}")
        I(f"ds_write_b32 v{vT+1}, v{c+j} offset:{P2_GB+1024*j+8}")
    I("s_waitcnt lgkmcnt(0)")
    L(f"{name}_noscan")
    I("s_barrier")
    I(f"v_mov_b32 v{vT+4}, {P2_FLAG}")
    I(f"ds_read_b32 v{vT+5}, v{vT+4}")
    I(f"v_cmp_gt_u32 vcc, {EPB}, v0")
    I("s_mov_b64 exec, vcc")
    I(f"ds_read_b32 v{vT}, v{vTid4} offset:{P2_CNT}")
    I(f"ds_read_b32 v{vBase}, v{vTid16} offset:{P2_GB+8}")
    I(f"v_mov_b32 v{vT+2}, 0")
    I(f"v_mov_b32 v{vT+3}, 0")
    I("s_waitcnt lgkmcnt(0)")
    I(f"v_readfirstlane_b32 s{sMore}, v{vT+5}") if False else None
    I(f"v_add_u32 v{vN2}, 1, v{vT}")
    I(f"v_lshl_add_u32 v{vT+1}, v{vT}, 3, v{vBase}")
    I(f"v_and_b32 v{vT}, 1, v{vT}")
    I(f"v_lshrrev_b32 v{vN2}, 1, v{vN2}")
    I(f"v_cmp_eq_u32 vcc, 1, v{vT}")
    I("s_and_b64 exec, exec, vcc")
    I(f"ds_write_b64 v{vT+1}, {vr(vT+2,2)}")
    I("s_mov_b64 exec, -1")
    I(f"v_readfirstlane_b32 s{sMore}, v{vT+5}")
    def gread(s):
        I(f"s_bfm_b64 exec, s{sN+s}, 0")
        gs = vGS + 8*(s % 2)
        I(f"ds_read_b128 {vr(gs,4)}, v{vREC+2*s} offset:{P2_GA}")
        I(f"ds_read_b128 {vr(gs+4,4)}, v{vREC+2*s} offset:{P2_GB}")
    I("s_waitcnt lgkmcnt(0)")
    gread(0)
    for s in range(NSLOT):
        gs = vGS + 8*(s % 2)
        c1 = vREC + 2*s + 1
        md = vMD + 2*(s % RING)
        if s + D < NSLOT:
            gather(s + D)
        nyoung = 0
        if s + 1 < NSLOT:
            gread(s + 1)
            nyoung = 2
        if s > 0:
            nyoung += 1
        I(f"s_bfm_b64 exec, s{sN+s}, 0")
        q, c2, c3, c12, c3l, c3h = vT+4, vT+5, vT+6, vT+7, vT+4, vT+5
        I(f"v_mul_f32 v{q}, v{c1}, v{c1}")
        I(f"v_fma_f32 v{c2}, v{q}, 2.0, -1.0")
        I(f"v_fma_f32 v{c3}, v{c2}, 2.0, -1.0")
        I(f"v_cvt_pk_bf16_f32 v{c12}, v{c1}, v{c2}")
        I(f"v_mul_f32 v{c3}, v{c3}, v{c1}")
        I(f"v_cvt_pk_bf16_f32 v{c3l}, v{c3}, 0")
        I(f"v_cvt_pk_bf16_f32 v{c3h}, 0, v{c3}")
        I(f"s_waitcnt lgkmcnt({nyoung})")
        for d in range(4):
            I(f"v_dot2_f32_bf16 v{gs+d}, v{gs+d}, v{c12}, 0")
        I(f"v_dot2_f32_bf16 v{gs+0}, v{gs+4}, v{c3l}, v{gs+0}")
        I(f"v_dot2_f32_bf16 v{gs+1}, v{gs+4}, v{c3h}, v{gs+1}")
        I(f"v_dot2_f32_bf16 v{gs+2}, v{gs+5}, v{c3l}, v{gs+2}")
        I(f"v_dot2_f32_bf16 v{gs+3}, v{gs+5}, v{c3h}, v{gs+3}")
        I(f"v_lshl_add_u32 v{gs+6}, v{vRK+s}, 3, v{gs+6}")
        I(f"s_waitcnt vmcnt({min(D, NSLOT-1-s)})")
        I(f"v_lshlrev_b32 v{vT}, 16, v{md}")
        I(f"v_and_b32 v{vT+1}, 0xffff0000, v{md}")
        I(f"v_lshlrev_b32 v{vT+2}, 16, v{md+1}")
        I(f"v_and_b32 v{vT+3}, 0xffff0000, v{md+1}")
        I(f"v_pk_mul_f32 {vr(vT,2)}, {vr(vT,2)}, {vr(gs,2)}")
        I(f"v_pk_mul_f32 {vr(vT+2,2)}, {vr(vT+2,2)}, {vr(gs+2,2)}")
        I(f"v_cvt_pk_bf16_f32 v{md}, v{vT}, v{vT+1}")
        I(f"v_cvt_pk_bf16_f32 v{md+1}, v{vT+2}, v{vT+3}")
        I(f"ds_write_b64 v{gs+6}, {vr(md,2)}")
    I("s_mov_b64 exec, -1")
    I("s_waitcnt lgkmcnt(0)")
    I("s_barrier")
    I("s_cmp_ge_u32 s3, 10")
    I(f"s_cbranch_scc1 {name}_nored")
    X0, X1 = vGS, vGS + 4
    I("s_mov_b32 s97, 0x00003f80")
    I("s_mov_b32 s98, 0x3f800000")
    I(f"v_cmpx_lt_u32 vcc, 0, v{vN2}")
    I(f"s_cbranch_execz {name}_reddone")
    I(f"ds_read_b128 {vr(X0,4)}, v{vBase}")
    I(f"s_mov_b32 s{sT0}, 1")
    L(f"{name}_redloop")
    I(f"ds_read_b128 {vr(X1,4)}, v{vBase} offset:16")
    I("s_waitcnt lgkmcnt(1)")
    def accum(X):
        for r in range(2):
            I(f"v_dot2c_f32_bf16 v{vAcc+0}, s97, v{X+2*r}")
            I(f"v_dot2c_f32_bf16 v{vAcc+1}, s98, v{X+2*r}")
            I(f"v_dot2c_f32_bf16 v{vAcc+2}, s97, v{X+2*r+1}")
            I(f"v_dot2c_f32_bf16 v{vAcc+3}, s98, v{X+2*r+1}")
    accum(X0)
    I(f"v_cmpx_lt_u32 vcc, s{sT0}, v{vN2}")
    I(f"s_cbranch_execz {name}_reddone")
    I(f"ds_read_b128 {vr(X0,4)}, v{vBase} offset:32")
    I(f"s_add_u32 s{sT0}, s{sT0}, 1")
    I("s_waitcnt lgkmcnt(1)")
    accum(X1)
    I(f"v_add_u32 v{vBase}, 32, v{vBase}")
    I(f"v_cmpx_lt_u32 vcc, s{sT0}, v{vN2}")
    I(f"s_add_u32 s{sT0}, s{sT0}, 1")
    I(f"s_cbranch_execnz {name}_redloop")
    L(f"{name}_reddone")
    I("s_mov_b64 exec, -1")
    I("s_waitcnt lgkmcnt(0)")
    L(f"{name}_nored")
    I(f"s_cmp_eq_u32 s{sMore}, 0")
    I(f"s_cbranch_scc1 {name}_final")
    I("s_barrier")
    I(f"v_mov_b32 v{vT}, 0")
    I(f"v_cmp_gt_u32 vcc, {EPB+4}, v0")
    I("s_mov_b64 exec, vcc")
    I(f"ds_write_b32 v{vTid4}, v{vT} offset:{P2_CNT}")
    I("s_mov_b64 exec, -1")
    I(f"s_add_u32 s{sBase}, s{sBase}, {BLK}")
    I("s_waitcnt lgkmcnt(0)")
    I("s_barrier")
    I(f"s_branch {name}_round")
    L(f"{name}_final")
    I("s_cmp_ge_u32 s3, 10")
    I(f"s_cbranch_scc1 {name}_end")
    f = vGS
    I(f"v_cvt_pk_bf16_f32 v{f}, v{vAcc}, v{vAcc+1}")
    I(f"v_cvt_pk_bf16_f32 v{f+1}, v{vAcc+2}, v{vAcc+3}")
    for d in range(4):
        I(f"v_dot2_f32_bf16 v{f+2+d}, v{f}, s{88+2*d}, 0")
    for d in range(4):
        I(f"v_dot2c_f32_bf16 v{f+2+d}, s{88+2*d+1}, v{f+1}")
    I("s_nop 2")
    I(f"v_cvt_pk_bf16_f32 v{f}, v{f+2}, v{f+3}")
    I(f"v_cvt_pk_bf16_f32 v{f+1}, v{f+4}, v{f+5}")
    I(f"v_lshlrev_b32 v{f+2}, 16, v{f}")
    I(f"v_and_b32 v{f+3}, 0xffff0000, v{f}")
    I(f"v_lshlrev_b32 v{f+4}, 16, v{f+1}")
    I(f"v_and_b32 v{f+5}, 0xffff0000, v{f+1}")
    I(f"v_lshlrev_b32 v{f+6}, 16, v{vGate}")
    I(f"v_and_b32 v{f+7}, 0xffff0000, v{vGate}")
    I(f"v_lshlrev_b32 v{f+8}, 16, v{vGate+1}")
    I(f"v_and_b32 v{f+9}, 0xffff0000, v{vGate+1}")
    for d in range(4):
        I(f"v_mul_f32 v{f+2+d}, v{f+2+d}, v{f+6+d}")
    I(f"v_cvt_pk_bf16_f32 v{f}, v{f+2}, v{f+3}")
    I(f"v_cvt_pk_bf16_f32 v{f+1}, v{f+4}, v{f+5}")
    I(f"v_lshlrev_b32 v{f+2}, 16, v{f}")
    I(f"v_and_b32 v{f+3}, 0xffff0000, v{f}")
    I(f"v_lshlrev_b32 v{f+4}, 16, v{f+1}")
    I(f"v_and_b32 v{f+5}, 0xffff0000, v{f+1}")
    I(f"v_lshlrev_b32 v{f+6}, 16, v{vM}")
    I(f"v_and_b32 v{f+7}, 0xffff0000, v{vM}")
    I(f"v_lshlrev_b32 v{f+8}, 16, v{vM+1}")
    I(f"v_and_b32 v{f+9}, 0xffff0000, v{vM+1}")
    for d in range(4):
        I(f"v_add_f32 v{f+2+d}, v{f+2+d}, v{f+6+d}")
    I(f"v_cvt_pk_bf16_f32 v{f}, v{f+2}, v{f+3}")
    I(f"v_cvt_pk_bf16_f32 v{f+1}, v{f+4}, v{f+5}")
    I(f"v_lshlrev_b32 v{f+2}, 3, v0")
    I("s_mul_i32 s28, s2, 5120")
    I(f"buffer_store_dwordx2 {vr(f,2)}, v{f+2}, s[{sOUT}:{sOUT+3}], s28 offen")
    L(f"{name}_end")
    I("s_endpgm")

def desc(name, vgpr, sgpr=102):
    acc = (vgpr + 3) // 4 * 4
    e(f".amdhsa_kernel {name}")
    e(f"  .amdhsa_next_free_vgpr {vgpr}")
    e(f"  .amdhsa_next_free_sgpr {sgpr}")
    e(f"  .amdhsa_accum_offset {acc}")
    e("  .amdhsa_group_segment_fixed_size 0")
    e("  .amdhsa_kernarg_size 112")
    e("  .amdhsa_user_sgpr_count 2")
    e("  .amdhsa_user_sgpr_kernarg_segment_ptr 1")
    e("  .amdhsa_system_sgpr_workgroup_id_x 1")
    e(".end_amdhsa_kernel")

K1 = "gs_bin_kernel"
K2 = "gather_scatter__molecular_angular_gemnet__graph_kernel"

def main(path):
    e("; GemNet triplet gather/scatter: pass 1 bins triplets by output edge block, pass 2 reduces per block")
    e(f"; @launch kernel={K1} grid=({NB},1,1) block=(1024,1,1) lds={P1_LDS}")
    e(f"; @launch kernel={K2} grid=({NB},1,1) block=(1024,1,1) lds={P2_LDS}")
    e('.amdgcn_target "amdgcn-amd-amdhsa--gfx950"')
    e(".text")
    e(f".globl {K1}")
    e(f".globl {K2}")
    p1(K1)
    p2(K2)
    e('.section .rodata,"a"')
    e(".p2align 6")
    desc(K1, 92)
    e(".p2align 6")
    desc(K2, 116)
    open(path, "w").write("\n".join(x for x in out if x is not None) + "\n")

if __name__ == "__main__":
    main(sys.argv[1] if len(sys.argv) > 1 else "gather_scatter__molecular_angular_gemnet__graph.s")
```

```python
import sys

E = 160000
T = 2560000
NB = 250
EPB = 640
CH = 10240
REC_OFF = 0
REC_BYTES = T * 8
OFFS_OFF = 0x1400000
OFFS_BYTES = NB * 1024
MD_OFF = 0x1500000
MD_BYTES = E * 8
WS_USED = MD_OFF + MD_BYTES
W3 = 0x00020000
BLK = 63
NSLOT = 17
D = 5
RING = D + 1

import os
LDF = os.environ.get('LDF','')
STF = os.environ.get('STF','')
RLF = os.environ.get('RLF','')
out = []
def e(s=""):
    out.append(s)
def I(s):
    out.append("    " + s)
def L(s):
    out.append(s + ":")

def vr(a, n=1):
    return f"v{a}" if n == 1 else f"v[{a}:{a+n-1}]"
def sr(a, n=1):
    return f"s{a}" if n == 1 else f"s[{a}:{a+n-1}]"

def srd(base, nbytes, add=0):
    if add:
        I(f"s_add_u32 s{base}, s{base}, {add:#x}")
        I(f"s_addc_u32 s{base+1}, s{base+1}, 0")
    I(f"s_mov_b32 s{base+2}, {nbytes}")
    I(f"s_mov_b32 s{base+3}, {W3:#x}")

def wave_scan(reg):
    for sh in (1, 2, 4, 8):
        I("s_nop 1")
        I(f"v_add_u32_dpp v{reg}, v{reg}, v{reg} row_shr:{sh} row_mask:0xf bank_mask:0xf bound_ctrl:0")
    I("s_nop 1")
    I(f"v_add_u32_dpp v{reg}, v{reg}, v{reg} row_bcast:15 row_mask:0xa bank_mask:0xf")
    I("s_nop 1")
    I(f"v_add_u32_dpp v{reg}, v{reg}, v{reg} row_bcast:31 row_mask:0xc bank_mask:0xf")

P1_CNT = 0
P1_OFF = 1024
P1_STAGE = 2048
P1_LDS = P1_STAGE + CH * 8

def p1(name):
    e(".p2align 8")
    e(f".type {name},@function")
    L(name)
    I(f"s_cmp_ge_u32 s2, {NB}")
    I(f"s_cbranch_scc1 {name}_end")
    I("s_load_dwordx2 s[8:9], s[0:1], 16")
    I("s_load_dwordx2 s[4:5], s[0:1], 8")
    I("s_load_dwordx2 s[12:13], s[0:1], 32")
    I("s_load_dwordx2 s[16:17], s[0:1], 0")
    I("s_load_dwordx2 s[20:21], s[0:1], 104")
    I("s_load_dwordx2 s[24:25], s[0:1], 72")
    vO, vI_, vA, vM, vB, vR, vW = 8, 18, 28, 34, 36, 46, 56
    vT = 76
    I("v_lshlrev_b32 v1, 4, v0")
    I("v_lshlrev_b32 v2, 3, v0")
    I("v_lshlrev_b32 v3, 2, v0")
    I("v_mov_b32 v4, 1")
    I("v_mov_b32 v5, 0")
    I("v_and_b32 v6, 0x3fc, v3")
    I(f"ds_write_b32 v6, v5 offset:{P1_CNT}")
    I("s_mul_i32 s40, s2, 40960")
    I("s_add_u32 s41, s40, 16384")
    I("s_add_u32 s42, s40, 32768")
    I("s_mul_i32 s43, s2, 20480")
    I("s_add_u32 s44, s43, 8192")
    I("s_add_u32 s45, s43, 16384")
    I("s_mul_i32 s46, s2, 5120")
    I(f"s_add_u32 s47, s46, {MD_OFF:#x}")
    I("s_mul_i32 s48, s2, 81920")
    for k in range(1, 5):
        I(f"s_add_u32 s{48+k}, s48, {16384*k}")
    I("s_lshl_b32 s53, s2, 10")
    I(f"s_add_u32 s53, s53, {OFFS_OFF:#x}")
    I("s_movk_i32 s54, 0xfd80")
    I("s_mov_b32 s10, 10240000")
    I(f"s_mov_b32 s11, {W3:#x}")
    I("s_mov_b32 s6, 10240000")
    I(f"s_mov_b32 s7, {W3:#x}")
    I("s_mov_b32 s14, 5120000")
    I(f"s_mov_b32 s15, {W3:#x}")
    I(f"s_mov_b32 s18, {E*8}")
    I(f"s_mov_b32 s19, {W3:#x}")
    I(f"s_mov_b32 s22, {WS_USED}")
    I(f"s_mov_b32 s23, {W3:#x}")
    I("s_waitcnt lgkmcnt(0)")
    I(f"buffer_load_dwordx4 {vr(vO,4)}, v1, s[8:11], s40 offen {LDF}")
    I(f"buffer_load_dwordx4 {vr(vO+4,4)}, v1, s[8:11], s41 offen {LDF}")
    I(f"buffer_load_dwordx2 {vr(vO+8,2)}, v2, s[8:11], s42 offen {LDF}")
    I(f"buffer_load_dwordx2 {vr(vM,2)}, v2, s[16:19], s46 offen")
    I(f"buffer_load_dwordx4 {vr(vI_,4)}, v1, s[4:7], s40 offen {LDF}")
    I(f"buffer_load_dwordx2 {vr(vA,2)}, v2, s[12:15], s43 offen {LDF}")
    I(f"buffer_load_dwordx4 {vr(vI_+4,4)}, v1, s[4:7], s41 offen {LDF}")
    I(f"buffer_load_dwordx2 {vr(vA+2,2)}, v2, s[12:15], s44 offen {LDF}")
    I(f"buffer_load_dwordx2 {vr(vI_+8,2)}, v2, s[4:7], s42 offen {LDF}")
    I(f"buffer_load_dword {vr(vA+4)}, v3, s[12:15], s45 offen {LDF}")
    I("s_load_dwordx8 s[28:35], s[24:25], 0")
    I("s_barrier")
    for j in range(10):
        if j == 0: I("s_waitcnt vmcnt(9)")
        if j == 4: I("s_waitcnt vmcnt(8)")
        if j == 8: I("s_waitcnt vmcnt(7)")
        t = vT + (j % 4)
        I(f"v_lshrrev_b32 v{t}, 7, v{vO+j}")
        I(f"v_mul_u32_u24 v{t}, 0xcccd, v{t}")
        I(f"v_lshrrev_b32 v{t}, 18, v{t}")
        I(f"v_lshlrev_b32 v{vB+j}, 2, v{t}")
        I(f"v_mad_i32_i24 v{t}, v{t}, s54, v{vO+j}")
        I(f"ds_add_rtn_u32 v{vR+j}, v{vB+j}, v4 offset:{P1_CNT}")
        I(f"v_lshlrev_b32 v{vO+j}, 21, v{t}")
    I("s_waitcnt lgkmcnt(0)")
    I("s_barrier")
    c = 80
    o = 84
    I("v_and_b32 v6, 63, v0")
    I("v_lshlrev_b32 v6, 4, v6")
    I(f"ds_read_b128 {vr(c,4)}, v6 offset:{P1_CNT}")
    I("s_waitcnt lgkmcnt(0)")
    I(f"v_add_u32 v{o+2}, v{c}, v{c+1}")
    I(f"v_add_u32 v{o+3}, v{o+2}, v{c+2}")
    I(f"v_add_u32 v88, v{o+3}, v{c+3}")
    I("v_mov_b32 v89, v88")
    wave_scan(89)
    I(f"v_sub_u32 v{o}, v89, v88")
    I(f"v_add_u32 v{o+1}, v{o}, v{c}")
    I(f"v_add_u32 v{o+2}, v{o}, v{o+2}")
    I(f"v_add_u32 v{o+3}, v{o}, v{o+3}")
    I(f"ds_write_b128 v6, {vr(o,4)} offset:{P1_OFF}")
    for j in range(10):
        I(f"ds_read_b32 v{vB+j}, v{vB+j} offset:{P1_OFF}")
    I("v_cmp_gt_u32 vcc, 64, v0")
    I("s_and_saveexec_b64 s[56:57], vcc")
    I(f"s_cbranch_execz {name}_noff")
    I(f"buffer_store_dwordx4 {vr(o,4)}, v6, s[20:23], s53 offen")
    L(f"{name}_noff")
    I("s_mov_b64 exec, s[56:57]")
    for j in range(10):
        g = 0 if j < 4 else (1 if j < 8 else 2)
        if j == 0:
            I("s_waitcnt vmcnt(4)")
        if j == 4: I("s_waitcnt vmcnt(2)")
        if j == 8: I("s_waitcnt vmcnt(0)")
        jj = j - (0, 4, 8)[g]
        areg = vA + (0, 2, 4)[g] + jj // 2
        t = vT + (j % 4)
        if jj % 2 == 0:
            I(f"v_lshlrev_b32 v{t}, 16, v{areg}")
        else:
            I(f"v_and_b32 v{t}, 0xffff0000, v{areg}")
        I(f"v_mul_f32 v{t}, 0.15915494, v{t}")
        I(f"v_fract_f32 v{t}, v{t}")
        I(f"v_cos_f32 v{vW+2*j+1}, v{t}")
        I(f"v_lshl_or_b32 v{vW+2*j}, v{vI_+j}, 3, v{vO+j}")
        if j == 0:
            I("s_waitcnt lgkmcnt(0)")
        I(f"v_add_lshl_u32 v{vB+j}, v{vB+j}, v{vR+j}, 3")
        I(f"ds_write_b64 v{vB+j}, {vr(vW+2*j,2)} offset:{P1_STAGE}")
    for dd in range(2):
        I(f"s_pack_ll_b32_b16 s{58+4*dd+0}, s{28+dd}, s{30+dd}")
        I(f"s_pack_ll_b32_b16 s{58+4*dd+1}, s{32+dd}, s{34+dd}")
        I(f"s_pack_hh_b32_b16 s{58+4*dd+2}, s{28+dd}, s{30+dd}")
        I(f"s_pack_hh_b32_b16 s{58+4*dd+3}, s{32+dd}, s{34+dd}")
    for d in range(4):
        I(f"v_dot2_f32_bf16 v{vT+d}, v{vM}, s{58+2*d}, 0")
    for d in range(4):
        I(f"v_dot2c_f32_bf16 v{vT+d}, s{58+2*d+1}, v{vM+1}")
    I("s_nop 2")
    I(f"v_cvt_pk_bf16_f32 v{vT+4}, v{vT}, v{vT+1}")
    I(f"v_cvt_pk_bf16_f32 v{vT+5}, v{vT+2}, v{vT+3}")
    I(f"v_cmp_gt_u32 vcc, {EPB}, v0")
    I("s_and_saveexec_b64 s[56:57], vcc")
    I(f"s_cbranch_execz {name}_nomd")
    I(f"buffer_store_dwordx2 {vr(vT+4,2)}, v2, s[20:23], s47 offen")
    L(f"{name}_nomd")
    I("s_mov_b64 exec, s[56:57]")
    I("s_waitcnt lgkmcnt(0)")
    I("s_barrier")
    I("v_add_u32 v6, 0x10000, v1")
    for k in range(5):
        if k < 4:
            I(f"ds_read_b128 {vr(vW+4*k,4)}, v1 offset:{P1_STAGE+16384*k}")
        else:
            I(f"ds_read_b128 {vr(vW+4*k,4)}, v6 offset:{P1_STAGE}")
    for k in range(5):
        I(f"s_waitcnt lgkmcnt({4-k})")
        I(f"buffer_store_dwordx4 {vr(vW+4*k,4)}, v1, s[20:23], s{48+k} offen {STF}")
    L(f"{name}_end")
    I("s_endpgm")

P2_CNT = 0
P2_FLAG = EPB * 4
P2_GA = 2576
P2_GB = P2_GA + EPB * 16
P2_PAY = P2_GB + EPB * 16
P2_CAP = NB * BLK + 16 * BLK + EPB
P2_LDS = P2_PAY + P2_CAP * 8
assert P2_PAY % 16 == 0 and P2_LDS <= 163840, P2_LDS

def p2(name):
    e(".p2align 8")
    e(f".type {name},@function")
    L(name)
    sREC, sMD, sOFF, sM, sDIST, sOUT = 4, 8, 12, 16, 20, 24
    sN = 28
    sBase, sFav, sT0 = 45, 46, 47
    sW = 48
    sT1, sT2 = 98, 99
    sMore = 96
    vLane, vLane8, vOne = 1, 2, 3
    vM, vGate, vAcc, vN2, vBase = 4, 6, 8, 12, 13
    vREC = 14
    vRK = 48
    vMD = 66
    vGS = 78
    vT = 94
    vO = 104
    vRem, vN, vSoff, vL16, vRO, vRunBase = 106, 107, 108, 109, 110, 111
    vTid4, vTid16, vDist = 112, 113, 114
    I(f"s_cmp_ge_u32 s2, {NB}")
    I(f"s_cbranch_scc1 {name}_end")
    I(f"s_load_dwordx2 s[{sREC}:{sREC+1}], s[0:1], 104")
    I(f"s_load_dwordx2 s[{sMD}:{sMD+1}], s[0:1], 104")
    I(f"s_load_dwordx2 s[{sOFF}:{sOFF+1}], s[0:1], 104")
    I(f"s_load_dwordx2 s[{sM}:{sM+1}], s[0:1], 0")
    I(f"s_load_dwordx2 s[{sDIST}:{sDIST+1}], s[0:1], 24")
    I("s_load_dwordx4 s[96:99], s[0:1], 56")
    I("s_load_dwordx2 s[46:47], s[0:1], 40")
    I("s_load_dwordx2 s[100:101], s[0:1], 80")
    I(f"v_lshlrev_b32 v{vTid4}, 2, v0")
    I(f"v_lshlrev_b32 v{vTid16}, 4, v0")
    I(f"v_mov_b32 v{vT}, 0")
    I(f"v_cmp_gt_u32 vcc, {EPB+4}, v0")
    I("s_mov_b64 exec, vcc")
    I(f"ds_write_b32 v{vTid4}, v{vT} offset:{P2_CNT}")
    I("s_mov_b64 exec, -1")
    I(f"v_and_b32 v{vLane}, 63, v0")
    I(f"v_lshlrev_b32 v{vLane8}, 3, v{vLane}")
    I(f"v_mov_b32 v{vOne}, 1")
    I(f"v_lshrrev_b32 v{vT}, 6, v0")
    I(f"v_and_b32 v{vL16}, 15, v0")
    I(f"v_readfirstlane_b32 s3, v{vT}")
    for i in range(4):
        I(f"v_mov_b32 v{vAcc+i}, 0")
    I(f"v_lshl_add_u32 v{vT+1}, v{vT}, 4, v{vL16}")
    I(f"v_lshlrev_b32 v{vRO}, 10, v{vT+1}")
    I(f"s_lshl_b32 s{sT0+0}, s2, 2") if False else None
    I(f"v_mul_u32_u24 v{vRunBase}, 0x14000, v{vT+1}")
    I(f"v_lshl_add_u32 v{vRO}, s2, 2, v{vRO}")
    I(f"v_lshlrev_b32 v{vT+2}, 3, v0")
    I(f"v_lshlrev_b32 v{vT+3}, 1, v0")
    I("s_mul_i32 s28, s2, 5120")
    I("s_mul_i32 s29, s2, 1280")
    I("s_waitcnt lgkmcnt(0)")
    srd(sREC, REC_BYTES, REC_OFF)
    srd(sMD, MD_BYTES, MD_OFF)
    srd(sOFF, OFFS_BYTES, OFFS_OFF)
    srd(sM, E * 8)
    srd(sDIST, E * 2)
    I(f"buffer_load_ushort v{vDist}, v{vT+3}, s[{sDIST}:{sDIST+3}], s29 offen")
    I(f"buffer_load_dwordx2 {vr(vM,2)}, v{vT+2}, s[{sM}:{sM+3}], s28 offen")
    I(f"s_load_dwordx16 s[{sW}:{sW+15}], s[98:99], 0")
    I(f"s_load_dwordx16 s[{sW+16}:{sW+31}], s[98:99], 64")
    I(f"s_load_dwordx16 s[{sW+32}:{sW+47}], s[98:99], 128")
    I("s_load_dwordx4 s[24:27], s[46:47], 0")
    I(f"s_mov_b32 s{sBase}, 0")
    I(f"s_mov_b32 s{sFav}, -1")
    I("s_barrier")
    L(f"{name}_round")
    I(f"buffer_load_dwordx2 {vr(vO,2)}, v{vRO}, s[{sOFF}:{sOFF+3}], 0 offen")
    I(f"v_cmp_eq_u32 vcc, s{sFav}, v{vL16}")
    I(f"v_mov_b32 v{vT}, s{sBase}")
    I("s_nop 0")
    I(f"v_cndmask_b32_e64 v{vT+1}, 0, {BLK}, vcc")
    I(f"v_add_u32 v{vT}, v{vT}, v{vT+1}")
    I("s_waitcnt vmcnt(0)")
    I(f"v_sub_u32 v{vRem}, v{vO+1}, v{vO}")
    I(f"v_add_u32 v{vT+1}, v{vO}, v{vT}")
    I(f"v_sub_u32 v{vRem}, v{vRem}, v{vT}")
    I(f"v_lshl_add_u32 v{vSoff}, v{vT+1}, 3, v{vRunBase}")
    I(f"v_med3_i32 v{vN}, v{vRem}, 0, {BLK}")
    I("s_nop 0")
    for s in range(16):
        I(f"v_add_u32_dpp v{vREC+2*s}, v{vSoff}, v{vLane8} row_newbcast:{s} row_mask:0xf bank_mask:0xf")
        I(f"v_readlane_b32 s{sN+s}, v{vN}, {s}")
    for s in range(16):
        I(f"s_bfm_b64 exec, s{sN+s}, 0")
        I(f"buffer_load_dwordx2 {vr(vREC+2*s,2)}, v{vREC+2*s}, s[{sREC}:{sREC+3}], 0 offen {RLF}")
    I("s_mov_b64 exec, -1")
    I(f"s_mov_b32 s{sN+16}, 0")
    I(f"s_mov_b32 s{sT0}, 0")
    I(f"v_cmp_lt_i32 vcc, {BLK}, v{vRem}")
    I(f"s_cmp_lg_u32 s{sBase}, 0")
    I(f"s_cbranch_scc1 {name}_no16")
    I("s_and_b64 vcc, vcc, 0xffff")
    I(f"s_cbranch_scc0 {name}_no16")
    I(f"s_ff1_i32_b64 s{sFav}, vcc")
    I(f"v_readlane_b32 s{sN+16}, v{vRem}, s{sFav}")
    I(f"v_readlane_b32 s{sT0}, v{vSoff}, s{sFav}")
    I(f"v_cmp_eq_u32 vcc, s{sFav}, v{vL16}")
    I(f"s_sub_u32 s{sN+16}, s{sN+16}, {BLK}")
    I(f"s_min_u32 s{sN+16}, s{sN+16}, {BLK}")
    I(f"v_cndmask_b32_e64 v{vT+1}, 0, {BLK}, vcc")
    I(f"s_add_u32 s{sT0}, s{sT0}, {BLK*8}")
    I(f"v_sub_u32 v{vRem}, v{vRem}, v{vT+1}")
    L(f"{name}_no16")
    I(f"v_add_u32 v{vREC+32}, s{sT0}, v{vLane8}")
    I(f"v_cmp_lt_i32 vcc, {BLK}, v{vRem}")
    I(f"s_bfm_b64 exec, s{sN+16}, 0")
    I(f"buffer_load_dwordx2 {vr(vREC+32,2)}, v{vREC+32}, s[{sREC}:{sREC+3}], 0 offen {RLF}")
    I("s_mov_b64 exec, -1")
    I("s_and_b64 vcc, vcc, 0xffff")
    I(f"s_cbranch_scc0 {name}_nomore")
    I(f"v_mov_b32 v{vT}, {P2_FLAG}")
    I(f"ds_write_b32 v{vT}, v{vOne}")
    L(f"{name}_nomore")
    I(f"s_cmp_lg_u32 s{sBase}, 0")
    I(f"s_cbranch_scc1 {name}_nopro")
    I("s_cmp_ge_u32 s3, 10")
    I(f"s_cbranch_scc1 {name}_nopro")
    g = 48
    vRB = g
    vG = g + 4
    vE = g + 16
    I("s_waitcnt lgkmcnt(0)")
    I(f"v_lshlrev_b32 v{vDist}, 16, v{vDist}")
    for p in range(4):
        a, b_, pk = vE + 4*p, vE + 4*p + 1, vE + 4*p + 2
        I(f"s_lshl_b32 s{sT1}, s{24+p}, 16")
        I(f"s_and_b32 s{sT2}, s{24+p}, 0xffff0000")
        I(f"v_subrev_f32 v{a}, s{sT1}, v{vDist}")
        I(f"v_subrev_f32 v{b_}, s{sT2}, v{vDist}")
        I(f"v_cvt_pk_bf16_f32 v{pk}, v{a}, v{b_}")
        I(f"v_lshlrev_b32 v{a}, 16, v{pk}")
        I(f"v_and_b32 v{b_}, 0xffff0000, v{pk}")
        I(f"v_mul_f32 v{a}, v{a}, v{a}")
        I(f"v_mul_f32 v{b_}, v{b_}, v{b_}")
        I(f"v_cvt_pk_bf16_f32 v{pk}, v{a}, v{b_}")
        I(f"v_lshlrev_b32 v{a}, 16, v{pk}")
        I(f"v_and_b32 v{b_}, 0xffff0000, v{pk}")
        I(f"v_mul_f32 v{a}, 0xc1200000, v{a}")
        I(f"v_mul_f32 v{b_}, 0xc1200000, v{b_}")
        I(f"v_cvt_pk_bf16_f32 v{pk}, v{a}, v{b_}")
        I(f"v_lshlrev_b32 v{a}, 16, v{pk}")
        I(f"v_and_b32 v{b_}, 0xffff0000, v{pk}")
        I(f"v_mul_f32 v{a}, 0x3fb8aa3b, v{a}")
        I(f"v_mul_f32 v{b_}, 0x3fb8aa3b, v{b_}")
        I(f"v_exp_f32 v{a}, v{a}")
        I(f"v_exp_f32 v{b_}, v{b_}")
        I("s_nop 0")
        I(f"v_cvt_pk_bf16_f32 v{vRB+p}, v{a}, v{b_}")
    tmps = [sT0, sT1, sT2]
    ti = 0
    for p in range(4):
        for l in range(3):
            for dd in range(2):
                A = sW + (6*p + l) * 2 + dd
                B = sW + (6*p + 3 + l) * 2 + dd
                for hi in range(2):
                    d = 2*dd + hi
                    t = tmps[ti % 3]; ti += 1
                    I(f"s_pack_{'hh' if hi else 'll'}_b32_b16 s{t}, s{A}, s{B}")
                    if p == 0:
                        I(f"v_dot2_f32_bf16 v{vG+4*l+d}, v{vRB+p}, s{t}, 0")
                    else:
                        I(f"v_dot2c_f32_bf16 v{vG+4*l+d}, s{t}, v{vRB+p}")
    I(f"s_load_dwordx16 s[{sW}:{sW+15}], s[96:97], 0")
    I(f"s_load_dwordx8 s[{sW+16}:{sW+23}], s[100:101], 0")
    pa = vE
    for d in range(4):
        I(f"v_cvt_pk_bf16_f32 v{pa+d}, v{vG+d}, v{vG+4+d}")
    I(f"v_cvt_pk_bf16_f32 v{pa+4}, v{vG+8}, v{vG+9}")
    I(f"v_cvt_pk_bf16_f32 v{pa+5}, v{vG+10}, v{vG+11}")
    I(f"ds_write_b128 v{vTid16}, {vr(pa,4)} offset:{P2_GA}")
    I(f"ds_write_b64 v{vTid16}, {vr(pa+4,2)} offset:{P2_GB}")
    I("s_waitcnt lgkmcnt(0)")
    for p in range(4):
        for dd in range(2):
            A = sW + (2*p) * 2 + dd
            B = sW + (2*p + 1) * 2 + dd
            for hi in range(2):
                d = 2*dd + hi
                t = tmps[ti % 3]; ti += 1
                I(f"s_pack_{'hh' if hi else 'll'}_b32_b16 s{t}, s{A}, s{B}")
                if p == 0:
                    I(f"v_dot2_f32_bf16 v{vG+d}, v{vRB+p}, s{t}, 0")
                else:
                    I(f"v_dot2c_f32_bf16 v{vG+d}, s{t}, v{vRB+p}")
    I("s_nop 2")
    I(f"v_cvt_pk_bf16_f32 v{vGate}, v{vG}, v{vG+1}")
    I(f"v_cvt_pk_bf16_f32 v{vGate+1}, v{vG+2}, v{vG+3}")
    for dd in range(2):
        I(f"s_pack_ll_b32_b16 s{88+4*dd+0}, s{64+dd}, s{66+dd}")
        I(f"s_pack_ll_b32_b16 s{88+4*dd+1}, s{68+dd}, s{70+dd}")
        I(f"s_pack_hh_b32_b16 s{88+4*dd+2}, s{64+dd}, s{66+dd}")
        I(f"s_pack_hh_b32_b16 s{88+4*dd+3}, s{68+dd}, s{70+dd}")
    L(f"{name}_nopro")
    I("s_waitcnt lgkmcnt(0)")
    I(f"s_load_dwordx2 s[{sOUT}:{sOUT+1}], s[0:1], 88")
    I(f"s_mov_b32 s{sOUT+2}, {E*8}")
    I(f"s_mov_b32 s{sOUT+3}, {W3:#x}")
    for s in range(NSLOT):
        t = vT + (s % 4)
        I(f"s_bfm_b64 exec, s{sN+s}, 0")
        I(f"s_waitcnt vmcnt({NSLOT-1-s})")
        I(f"v_lshrrev_b32 v{t}, 21, v{vREC+2*s}")
        I(f"v_lshlrev_b32 v{t}, 2, v{t}")
        I(f"ds_add_rtn_u32 v{vRK+s}, v{t}, v{vOne} offset:{P2_CNT}")
    def gather(q):
        t = vT + 8 + (q % 2)
        w0 = vREC + 2*q
        I(f"s_bfm_b64 exec, s{sN+q}, 0")
        I(f"v_and_b32 v{t}, 0x1fffff, v{w0}")
        I(f"buffer_load_dwordx2 {vr(vMD+2*(q%RING),2)}, v{t}, s[{sMD}:{sMD+3}], 0 offen")
        I(f"v_lshrrev_b32 v{w0}, 17, v{w0}")
        I(f"v_and_b32 v{w0}, 0x3ff0, v{w0}")
    for q in range(D):
        gather(q)
    I("s_mov_b64 exec, -1")
    I("s_waitcnt lgkmcnt(0)")
    I("s_barrier")
    I("s_cmp_lg_u32 s3, 0")
    I(f"s_cbranch_scc1 {name}_noscan")
    c = vGS
    ee = vT
    I(f"v_lshlrev_b32 v{vT}, 2, v{vLane}")
    for j in range(10):
        I(f"ds_read_b32 v{c+j}, v{vT} offset:{P2_CNT+256*j}")
    I(f"v_lshlrev_b32 v{vT+1}, 4, v{vLane}")
    I("s_waitcnt lgkmcnt(0)")
    for j in range(10):
        I(f"v_lshl_add_u32 v{c+j}, v{c+j}, 3, 8")
        I(f"v_and_b32 v{c+j}, -16, v{c+j}")
    I(f"v_mov_b32 v{vT+2}, 0")
    for j in range(10):
        I(f"v_add_u32 v{vT+3}, v{vT+2}, v{c+j}")
        I(f"v_mov_b32 v{c+j}, v{vT+2}")
        I(f"v_mov_b32 v{vT+2}, v{vT+3}")
    I(f"v_mov_b32 v{vT+3}, v{vT+2}")
    wave_scan(vT+3)
    I(f"v_sub_u32 v{vT+3}, v{vT+3}, v{vT+2}")
    I(f"v_add_u32 v{vT+3}, {P2_PAY}, v{vT+3}")
    for j in range(10):
        I(f"v_add_u32 v{c+j}, v{c+j}, v{vT+3}")
        I(f"ds_write_b32 v{vT+1}, v{c+j} offset:{P2_GB+1024*j+8}")
    I("s_waitcnt lgkmcnt(0)")
    L(f"{name}_noscan")
    I("s_barrier")
    I(f"v_mov_b32 v{vT+4}, {P2_FLAG}")
    I(f"ds_read_b32 v{vT+5}, v{vT+4}")
    I(f"v_cmp_gt_u32 vcc, {EPB}, v0")
    I("s_mov_b64 exec, vcc")
    I(f"ds_read_b32 v{vT}, v{vTid4} offset:{P2_CNT}")
    I(f"ds_read_b32 v{vBase}, v{vTid16} offset:{P2_GB+8}")
    I(f"v_mov_b32 v{vT+2}, 0")
    I(f"v_mov_b32 v{vT+3}, 0")
    I("s_waitcnt lgkmcnt(0)")
    I(f"v_readfirstlane_b32 s{sMore}, v{vT+5}") if False else None
    I(f"v_add_u32 v{vN2}, 1, v{vT}")
    I(f"v_lshl_add_u32 v{vT+1}, v{vT}, 3, v{vBase}")
    I(f"v_and_b32 v{vT}, 1, v{vT}")
    I(f"v_lshrrev_b32 v{vN2}, 1, v{vN2}")
    I(f"v_cmp_eq_u32 vcc, 1, v{vT}")
    I("s_and_b64 exec, exec, vcc")
    I(f"ds_write_b64 v{vT+1}, {vr(vT+2,2)}")
    I("s_mov_b64 exec, -1")
    I(f"v_readfirstlane_b32 s{sMore}, v{vT+5}")
    def gread(s):
        I(f"s_bfm_b64 exec, s{sN+s}, 0")
        gs = vGS + 8*(s % 2)
        I(f"ds_read_b128 {vr(gs,4)}, v{vREC+2*s} offset:{P2_GA}")
        I(f"ds_read_b128 {vr(gs+4,4)}, v{vREC+2*s} offset:{P2_GB}")
    I("s_waitcnt lgkmcnt(0)")
    gread(0)
    for s in range(NSLOT):
        gs = vGS + 8*(s % 2)
        c1 = vREC + 2*s + 1
        md = vMD + 2*(s % RING)
        if s + D < NSLOT:
            gather(s + D)
        nyoung = 0
        if s + 1 < NSLOT:
            gread(s + 1)
            nyoung = 2
        if s > 0:
            nyoung += 1
        I(f"s_bfm_b64 exec, s{sN+s}, 0")
        q, c2, c3, c12, c3l, c3h = vT+4, vT+5, vT+6, vT+7, vT+4, vT+5
        I(f"v_mul_f32 v{q}, v{c1}, v{c1}")
        I(f"v_fma_f32 v{c2}, v{q}, 2.0, -1.0")
        I(f"v_fma_f32 v{c3}, v{c2}, 2.0, -1.0")
        I(f"v_cvt_pk_bf16_f32 v{c12}, v{c1}, v{c2}")
        I(f"v_mul_f32 v{c3}, v{c3}, v{c1}")
        I(f"v_cvt_pk_bf16_f32 v{c3l}, v{c3}, 0")
        I(f"v_cvt_pk_bf16_f32 v{c3h}, 0, v{c3}")
        I(f"s_waitcnt lgkmcnt({nyoung})")
        for d in range(4):
            I(f"v_dot2_f32_bf16 v{gs+d}, v{gs+d}, v{c12}, 0")
        I(f"v_dot2_f32_bf16 v{gs+0}, v{gs+4}, v{c3l}, v{gs+0}")
        I(f"v_dot2_f32_bf16 v{gs+1}, v{gs+4}, v{c3h}, v{gs+1}")
        I(f"v_dot2_f32_bf16 v{gs+2}, v{gs+5}, v{c3l}, v{gs+2}")
        I(f"v_dot2_f32_bf16 v{gs+3}, v{gs+5}, v{c3h}, v{gs+3}")
        I(f"v_lshl_add_u32 v{gs+6}, v{vRK+s}, 3, v{gs+6}")
        I(f"s_waitcnt vmcnt({min(D, NSLOT-1-s)})")
        I(f"v_lshlrev_b32 v{vT}, 16, v{md}")
        I(f"v_and_b32 v{vT+1}, 0xffff0000, v{md}")
        I(f"v_lshlrev_b32 v{vT+2}, 16, v{md+1}")
        I(f"v_and_b32 v{vT+3}, 0xffff0000, v{md+1}")
        I(f"v_pk_mul_f32 {vr(vT,2)}, {vr(vT,2)}, {vr(gs,2)}")
        I(f"v_pk_mul_f32 {vr(vT+2,2)}, {vr(vT+2,2)}, {vr(gs+2,2)}")
        I(f"v_cvt_pk_bf16_f32 v{md}, v{vT}, v{vT+1}")
        I(f"v_cvt_pk_bf16_f32 v{md+1}, v{vT+2}, v{vT+3}")
        I(f"ds_write_b64 v{gs+6}, {vr(md,2)}")
    I("s_mov_b64 exec, -1")
    I("s_waitcnt lgkmcnt(0)")
    I("s_barrier")
    I("s_cmp_ge_u32 s3, 10")
    I(f"s_cbranch_scc1 {name}_nored")
    X0, X1 = vGS, vGS + 4
    I("s_mov_b32 s97, 0x00003f80")
    I("s_mov_b32 s98, 0x3f800000")
    I(f"v_cmpx_lt_u32 vcc, 0, v{vN2}")
    I(f"s_cbranch_execz {name}_reddone")
    I(f"ds_read_b128 {vr(X0,4)}, v{vBase}")
    I(f"s_mov_b32 s{sT0}, 1")
    L(f"{name}_redloop")
    I(f"ds_read_b128 {vr(X1,4)}, v{vBase} offset:16")
    I("s_waitcnt lgkmcnt(1)")
    def accum(X):
        for r in range(2):
            I(f"v_dot2c_f32_bf16 v{vAcc+0}, s97, v{X+2*r}")
            I(f"v_dot2c_f32_bf16 v{vAcc+1}, s98, v{X+2*r}")
            I(f"v_dot2c_f32_bf16 v{vAcc+2}, s97, v{X+2*r+1}")
            I(f"v_dot2c_f32_bf16 v{vAcc+3}, s98, v{X+2*r+1}")
    accum(X0)
    I(f"v_cmpx_lt_u32 vcc, s{sT0}, v{vN2}")
    I(f"s_cbranch_execz {name}_reddone")
    I(f"ds_read_b128 {vr(X0,4)}, v{vBase} offset:32")
    I(f"s_add_u32 s{sT0}, s{sT0}, 1")
    I("s_waitcnt lgkmcnt(1)")
    accum(X1)
    I(f"v_add_u32 v{vBase}, 32, v{vBase}")
    I(f"v_cmpx_lt_u32 vcc, s{sT0}, v{vN2}")
    I(f"s_add_u32 s{sT0}, s{sT0}, 1")
    I(f"s_cbranch_execnz {name}_redloop")
    L(f"{name}_reddone")
    I("s_mov_b64 exec, -1")
    I("s_waitcnt lgkmcnt(0)")
    L(f"{name}_nored")
    I(f"s_cmp_eq_u32 s{sMore}, 0")
    I(f"s_cbranch_scc1 {name}_final")
    I("s_barrier")
    I(f"v_mov_b32 v{vT}, 0")
    I(f"v_cmp_gt_u32 vcc, {EPB+4}, v0")
    I("s_mov_b64 exec, vcc")
    I(f"ds_write_b32 v{vTid4}, v{vT} offset:{P2_CNT}")
    I("s_mov_b64 exec, -1")
    I(f"s_add_u32 s{sBase}, s{sBase}, {BLK}")
    I("s_waitcnt lgkmcnt(0)")
    I("s_barrier")
    I(f"s_branch {name}_round")
    L(f"{name}_final")
    I("s_cmp_ge_u32 s3, 10")
    I(f"s_cbranch_scc1 {name}_end")
    f = vGS
    I(f"v_cvt_pk_bf16_f32 v{f}, v{vAcc}, v{vAcc+1}")
    I(f"v_cvt_pk_bf16_f32 v{f+1}, v{vAcc+2}, v{vAcc+3}")
    for d in range(4):
        I(f"v_dot2_f32_bf16 v{f+2+d}, v{f}, s{88+2*d}, 0")
    for d in range(4):
        I(f"v_dot2c_f32_bf16 v{f+2+d}, s{88+2*d+1}, v{f+1}")
    I("s_nop 2")
    I(f"v_cvt_pk_bf16_f32 v{f}, v{f+2}, v{f+3}")
    I(f"v_cvt_pk_bf16_f32 v{f+1}, v{f+4}, v{f+5}")
    I(f"v_lshlrev_b32 v{f+2}, 16, v{f}")
    I(f"v_and_b32 v{f+3}, 0xffff0000, v{f}")
    I(f"v_lshlrev_b32 v{f+4}, 16, v{f+1}")
    I(f"v_and_b32 v{f+5}, 0xffff0000, v{f+1}")
    I(f"v_lshlrev_b32 v{f+6}, 16, v{vGate}")
    I(f"v_and_b32 v{f+7}, 0xffff0000, v{vGate}")
    I(f"v_lshlrev_b32 v{f+8}, 16, v{vGate+1}")
    I(f"v_and_b32 v{f+9}, 0xffff0000, v{vGate+1}")
    for d in range(4):
        I(f"v_mul_f32 v{f+2+d}, v{f+2+d}, v{f+6+d}")
    I(f"v_cvt_pk_bf16_f32 v{f}, v{f+2}, v{f+3}")
    I(f"v_cvt_pk_bf16_f32 v{f+1}, v{f+4}, v{f+5}")
    I(f"v_lshlrev_b32 v{f+2}, 16, v{f}")
    I(f"v_and_b32 v{f+3}, 0xffff0000, v{f}")
    I(f"v_lshlrev_b32 v{f+4}, 16, v{f+1}")
    I(f"v_and_b32 v{f+5}, 0xffff0000, v{f+1}")
    I(f"v_lshlrev_b32 v{f+6}, 16, v{vM}")
    I(f"v_and_b32 v{f+7}, 0xffff0000, v{vM}")
    I(f"v_lshlrev_b32 v{f+8}, 16, v{vM+1}")
    I(f"v_and_b32 v{f+9}, 0xffff0000, v{vM+1}")
    for d in range(4):
        I(f"v_add_f32 v{f+2+d}, v{f+2+d}, v{f+6+d}")
    I(f"v_cvt_pk_bf16_f32 v{f}, v{f+2}, v{f+3}")
    I(f"v_cvt_pk_bf16_f32 v{f+1}, v{f+4}, v{f+5}")
    I(f"v_lshlrev_b32 v{f+2}, 3, v0")
    I("s_mul_i32 s28, s2, 5120")
    I(f"buffer_store_dwordx2 {vr(f,2)}, v{f+2}, s[{sOUT}:{sOUT+3}], s28 offen")
    L(f"{name}_end")
    I("s_endpgm")

def desc(name, vgpr, sgpr=102):
    acc = (vgpr + 3) // 4 * 4
    e(f".amdhsa_kernel {name}")
    e(f"  .amdhsa_next_free_vgpr {vgpr}")
    e(f"  .amdhsa_next_free_sgpr {sgpr}")
    e(f"  .amdhsa_accum_offset {acc}")
    e("  .amdhsa_group_segment_fixed_size 0")
    e("  .amdhsa_kernarg_size 112")
    e("  .amdhsa_user_sgpr_count 2")
    e("  .amdhsa_user_sgpr_kernarg_segment_ptr 1")
    e("  .amdhsa_system_sgpr_workgroup_id_x 1")
    e(".end_amdhsa_kernel")

K1 = "gs_bin_kernel"
K2 = "gather_scatter__molecular_angular_gemnet__graph_kernel"

def main(path):
    e("; GemNet triplet gather/scatter: pass 1 bins triplets by output edge block, pass 2 reduces per block")
    e(f"; @launch kernel={K1} grid=({NB},1,1) block=(1024,1,1) lds={P1_LDS}")
    e(f"; @launch kernel={K2} grid=({NB},1,1) block=(1024,1,1) lds={P2_LDS}")
    e('.amdgcn_target "amdgcn-amd-amdhsa--gfx950"')
    e(".text")
    e(f".globl {K1}")
    e(f".globl {K2}")
    p1(K1)
    p2(K2)
    e('.section .rodata,"a"')
    e(".p2align 6")
    desc(K1, 92)
    e(".p2align 6")
    desc(K2, 116)
    open(path, "w").write("\n".join(x for x in out if x is not None) + "\n")

if __name__ == "__main__":
    main(sys.argv[1] if len(sys.argv) > 1 else "gather_scatter__molecular_angular_gemnet__graph.s")
```

```python
import sys

E = 160000
T = 2560000
NB = 250
EPB = 640
CH = 10240
REC_OFF = 0
REC_BYTES = T * 8
OFFS_OFF = 0x1400000
OFFS_BYTES = NB * 1024
MD_OFF = 0x1500000
MD_BYTES = E * 8
WS_USED = MD_OFF + MD_BYTES
W3 = 0x00020000
BLK = 63
NSLOT = 17
D = 5
RING = D + 1

import os
LDF = os.environ.get('LDF','')
STF = os.environ.get('STF','')
RLF = os.environ.get('RLF','')
TS = int(os.environ.get('TS','0'))
TS_OFF = 0x2000000
out = []
def e(s=""):
    out.append(s)
def I(s):
    out.append("    " + s)
def L(s):
    out.append(s + ":")

def vr(a, n=1):
    return f"v{a}" if n == 1 else f"v[{a}:{a+n-1}]"
def sr(a, n=1):
    return f"s{a}" if n == 1 else f"s[{a}:{a+n-1}]"

def srd(base, nbytes, add=0):
    if add:
        I(f"s_add_u32 s{base}, s{base}, {add:#x}")
        I(f"s_addc_u32 s{base+1}, s{base+1}, 0")
    I(f"s_mov_b32 s{base+2}, {nbytes}")
    I(f"s_mov_b32 s{base+3}, {W3:#x}")

def stamp(v, k):
    if not TS: return
    I("s_memrealtime vcc")
    I("s_waitcnt lgkmcnt(0)")
    I(f"v_writelane_b32 v{v}, vcc_lo, {k}")

def stamp_out(v, which, t0, srd_base):
    if not TS: return
    I("s_mov_b64 exec, -1")
    I(f"s_load_dwordx2 s[{srd_base}:{srd_base+1}], s[0:1], 104")
    I(f"v_lshrrev_b32 v{t0}, 6, v0")
    I(f"v_lshlrev_b32 v{t0}, 6, v{t0}")
    I(f"v_and_b32 v{t0+1}, 63, v0")
    I(f"v_lshl_add_u32 v{t0}, v{t0+1}, 2, v{t0}")
    I(f"s_lshl_b32 s3, s2, 10")
    I(f"s_add_u32 s3, s3, {TS_OFF + which*0x40000:#x}")
    I("s_waitcnt lgkmcnt(0)")
    I(f"s_mov_b32 s{srd_base+2}, {TS_OFF + 0x80000:#x}")
    I(f"s_mov_b32 s{srd_base+3}, {W3:#x}")
    I("s_mov_b64 exec, 0xffff")
    I(f"buffer_store_dword v{v}, v{t0}, s[{srd_base}:{srd_base+3}], s3 offen")

def wave_scan(reg):
    for sh in (1, 2, 4, 8):
        I("s_nop 1")
        I(f"v_add_u32_dpp v{reg}, v{reg}, v{reg} row_shr:{sh} row_mask:0xf bank_mask:0xf bound_ctrl:0")
    I("s_nop 1")
    I(f"v_add_u32_dpp v{reg}, v{reg}, v{reg} row_bcast:15 row_mask:0xa bank_mask:0xf")
    I("s_nop 1")
    I(f"v_add_u32_dpp v{reg}, v{reg}, v{reg} row_bcast:31 row_mask:0xc bank_mask:0xf")

P1_CNT = 0
P1_OFF = 1024
P1_STAGE = 2048
P1_LDS = P1_STAGE + CH * 8

def p1(name):
    e(".p2align 8")
    e(f".type {name},@function")
    L(name)
    I(f"s_cmp_ge_u32 s2, {NB}")
    I(f"s_cbranch_scc1 {name}_end")
    stamp(91, 0)
    I("s_load_dwordx2 s[8:9], s[0:1], 16")
    I("s_load_dwordx2 s[4:5], s[0:1], 8")
    I("s_load_dwordx2 s[12:13], s[0:1], 32")
    I("s_load_dwordx2 s[16:17], s[0:1], 0")
    I("s_load_dwordx2 s[20:21], s[0:1], 104")
    I("s_load_dwordx2 s[24:25], s[0:1], 72")
    vO, vI_, vA, vM, vB, vR, vW = 8, 18, 28, 34, 36, 46, 56
    vT = 76
    I("v_lshlrev_b32 v1, 4, v0")
    I("v_lshlrev_b32 v2, 3, v0")
    I("v_lshlrev_b32 v3, 2, v0")
    I("v_mov_b32 v4, 1")
    I("v_mov_b32 v5, 0")
    I("v_and_b32 v6, 0x3fc, v3")
    I(f"ds_write_b32 v6, v5 offset:{P1_CNT}")
    I("s_mul_i32 s40, s2, 40960")
    I("s_add_u32 s41, s40, 16384")
    I("s_add_u32 s42, s40, 32768")
    I("s_mul_i32 s43, s2, 20480")
    I("s_add_u32 s44, s43, 8192")
    I("s_add_u32 s45, s43, 16384")
    I("s_mul_i32 s46, s2, 5120")
    I(f"s_add_u32 s47, s46, {MD_OFF:#x}")
    I("s_mul_i32 s48, s2, 81920")
    for k in range(1, 5):
        I(f"s_add_u32 s{48+k}, s48, {16384*k}")
    I("s_lshl_b32 s53, s2, 10")
    I(f"s_add_u32 s53, s53, {OFFS_OFF:#x}")
    I("s_movk_i32 s54, 0xfd80")
    I("s_mov_b32 s10, 10240000")
    I(f"s_mov_b32 s11, {W3:#x}")
    I("s_mov_b32 s6, 10240000")
    I(f"s_mov_b32 s7, {W3:#x}")
    I("s_mov_b32 s14, 5120000")
    I(f"s_mov_b32 s15, {W3:#x}")
    I(f"s_mov_b32 s18, {E*8}")
    I(f"s_mov_b32 s19, {W3:#x}")
    I(f"s_mov_b32 s22, {WS_USED}")
    I(f"s_mov_b32 s23, {W3:#x}")
    I("s_waitcnt lgkmcnt(0)")
    I(f"buffer_load_dwordx4 {vr(vO,4)}, v1, s[8:11], s40 offen {LDF}")
    I(f"buffer_load_dwordx4 {vr(vO+4,4)}, v1, s[8:11], s41 offen {LDF}")
    I(f"buffer_load_dwordx2 {vr(vO+8,2)}, v2, s[8:11], s42 offen {LDF}")
    I(f"buffer_load_dwordx2 {vr(vM,2)}, v2, s[16:19], s46 offen")
    I(f"buffer_load_dwordx4 {vr(vI_,4)}, v1, s[4:7], s40 offen {LDF}")
    I(f"buffer_load_dwordx2 {vr(vA,2)}, v2, s[12:15], s43 offen {LDF}")
    I(f"buffer_load_dwordx4 {vr(vI_+4,4)}, v1, s[4:7], s41 offen {LDF}")
    I(f"buffer_load_dwordx2 {vr(vA+2,2)}, v2, s[12:15], s44 offen {LDF}")
    I(f"buffer_load_dwordx2 {vr(vI_+8,2)}, v2, s[4:7], s42 offen {LDF}")
    I(f"buffer_load_dword {vr(vA+4)}, v3, s[12:15], s45 offen {LDF}")
    I("s_load_dwordx8 s[28:35], s[24:25], 0")
    stamp(91, 1)
    I("s_barrier")
    for j in range(10):
        if j == 0: I("s_waitcnt vmcnt(9)")
        if j == 4: I("s_waitcnt vmcnt(8)")
        if j == 8: I("s_waitcnt vmcnt(7)")
        t = vT + (j % 4)
        I(f"v_lshrrev_b32 v{t}, 7, v{vO+j}")
        I(f"v_mul_u32_u24 v{t}, 0xcccd, v{t}")
        I(f"v_lshrrev_b32 v{t}, 18, v{t}")
        I(f"v_lshlrev_b32 v{vB+j}, 2, v{t}")
        I(f"v_mad_i32_i24 v{t}, v{t}, s54, v{vO+j}")
        I(f"ds_add_rtn_u32 v{vR+j}, v{vB+j}, v4 offset:{P1_CNT}")
        I(f"v_lshlrev_b32 v{vO+j}, 21, v{t}")
    I("s_waitcnt lgkmcnt(0)")
    stamp(91, 2)
    I("s_barrier")
    stamp(91, 3)
    c = 80
    o = 84
    I("v_and_b32 v6, 63, v0")
    I("v_lshlrev_b32 v6, 4, v6")
    I(f"ds_read_b128 {vr(c,4)}, v6 offset:{P1_CNT}")
    I("s_waitcnt lgkmcnt(0)")
    I(f"v_add_u32 v{o+2}, v{c}, v{c+1}")
    I(f"v_add_u32 v{o+3}, v{o+2}, v{c+2}")
    I(f"v_add_u32 v88, v{o+3}, v{c+3}")
    I("v_mov_b32 v89, v88")
    wave_scan(89)
    I(f"v_sub_u32 v{o}, v89, v88")
    I(f"v_add_u32 v{o+1}, v{o}, v{c}")
    I(f"v_add_u32 v{o+2}, v{o}, v{o+2}")
    I(f"v_add_u32 v{o+3}, v{o}, v{o+3}")
    I(f"ds_write_b128 v6, {vr(o,4)} offset:{P1_OFF}")
    for j in range(10):
        I(f"ds_read_b32 v{vB+j}, v{vB+j} offset:{P1_OFF}")
    I("v_cmp_gt_u32 vcc, 64, v0")
    I("s_and_saveexec_b64 s[56:57], vcc")
    I(f"s_cbranch_execz {name}_noff")
    I(f"buffer_store_dwordx4 {vr(o,4)}, v6, s[20:23], s53 offen")
    L(f"{name}_noff")
    I("s_mov_b64 exec, s[56:57]")
    for j in range(10):
        g = 0 if j < 4 else (1 if j < 8 else 2)
        if j == 0:
            I("s_waitcnt vmcnt(4)")
        if j == 4: I("s_waitcnt vmcnt(2)")
        if j == 8: I("s_waitcnt vmcnt(0)")
        jj = j - (0, 4, 8)[g]
        areg = vA + (0, 2, 4)[g] + jj // 2
        t = vT + (j % 4)
        if jj % 2 == 0:
            I(f"v_lshlrev_b32 v{t}, 16, v{areg}")
        else:
            I(f"v_and_b32 v{t}, 0xffff0000, v{areg}")
        I(f"v_mul_f32 v{t}, 0.15915494, v{t}")
        I(f"v_fract_f32 v{t}, v{t}")
        I(f"v_cos_f32 v{vW+2*j+1}, v{t}")
        I(f"v_lshl_or_b32 v{vW+2*j}, v{vI_+j}, 3, v{vO+j}")
        if j == 0:
            I("s_waitcnt lgkmcnt(0)")
        I(f"v_add_lshl_u32 v{vB+j}, v{vB+j}, v{vR+j}, 3")
        I(f"ds_write_b64 v{vB+j}, {vr(vW+2*j,2)} offset:{P1_STAGE}")
    for dd in range(2):
        I(f"s_pack_ll_b32_b16 s{58+4*dd+0}, s{28+dd}, s{30+dd}")
        I(f"s_pack_ll_b32_b16 s{58+4*dd+1}, s{32+dd}, s{34+dd}")
        I(f"s_pack_hh_b32_b16 s{58+4*dd+2}, s{28+dd}, s{30+dd}")
        I(f"s_pack_hh_b32_b16 s{58+4*dd+3}, s{32+dd}, s{34+dd}")
    for d in range(4):
        I(f"v_dot2_f32_bf16 v{vT+d}, v{vM}, s{58+2*d}, 0")
    for d in range(4):
        I(f"v_dot2c_f32_bf16 v{vT+d}, s{58+2*d+1}, v{vM+1}")
    I("s_nop 2")
    I(f"v_cvt_pk_bf16_f32 v{vT+4}, v{vT}, v{vT+1}")
    I(f"v_cvt_pk_bf16_f32 v{vT+5}, v{vT+2}, v{vT+3}")
    I(f"v_cmp_gt_u32 vcc, {EPB}, v0")
    I("s_and_saveexec_b64 s[56:57], vcc")
    I(f"s_cbranch_execz {name}_nomd")
    I(f"buffer_store_dwordx2 {vr(vT+4,2)}, v2, s[20:23], s47 offen")
    L(f"{name}_nomd")
    I("s_mov_b64 exec, s[56:57]")
    I("s_waitcnt lgkmcnt(0)")
    stamp(91, 4)
    I("s_barrier")
    stamp(91, 5)
    I("v_add_u32 v6, 0x10000, v1")
    for k in range(5):
        if k < 4:
            I(f"ds_read_b128 {vr(vW+4*k,4)}, v1 offset:{P1_STAGE+16384*k}")
        else:
            I(f"ds_read_b128 {vr(vW+4*k,4)}, v6 offset:{P1_STAGE}")
    for k in range(5):
        I(f"s_waitcnt lgkmcnt({4-k})")
        I(f"buffer_store_dwordx4 {vr(vW+4*k,4)}, v1, s[20:23], s{48+k} offen {STF}")
    stamp(91, 6)
    if TS:
        I("s_waitcnt vmcnt(0)")
    stamp(91, 7)
    stamp_out(91, 0, 6, 24)
    L(f"{name}_end")
    I("s_endpgm")

P2_CNT = 0
P2_FLAG = EPB * 4
P2_GA = 2576
P2_GB = P2_GA + EPB * 16
P2_PAY = P2_GB + EPB * 16
P2_CAP = NB * BLK + 16 * BLK + EPB
P2_LDS = P2_PAY + P2_CAP * 8
assert P2_PAY % 16 == 0 and P2_LDS <= 163840, P2_LDS

def p2(name):
    e(".p2align 8")
    e(f".type {name},@function")
    L(name)
    sREC, sMD, sOFF, sM, sDIST, sOUT = 4, 8, 12, 16, 20, 24
    sN = 28
    sBase, sFav, sT0 = 45, 46, 47
    sW = 48
    sT1, sT2 = 98, 99
    sMore = 96
    vLane, vLane8, vOne = 1, 2, 3
    vM, vGate, vAcc, vN2, vBase = 4, 6, 8, 12, 13
    vREC = 14
    vRK = 48
    vMD = 66
    vGS = 78
    vT = 94
    vO = 104
    vRem, vN, vSoff, vL16, vRO, vRunBase = 106, 107, 108, 109, 110, 111
    vTid4, vTid16, vDist = 112, 113, 114
    I(f"s_cmp_ge_u32 s2, {NB}")
    I(f"s_cbranch_scc1 {name}_end")
    stamp(115, 0)
    I(f"s_load_dwordx2 s[{sREC}:{sREC+1}], s[0:1], 104")
    I(f"s_load_dwordx2 s[{sMD}:{sMD+1}], s[0:1], 104")
    I(f"s_load_dwordx2 s[{sOFF}:{sOFF+1}], s[0:1], 104")
    I(f"s_load_dwordx2 s[{sM}:{sM+1}], s[0:1], 0")
    I(f"s_load_dwordx2 s[{sDIST}:{sDIST+1}], s[0:1], 24")
    I("s_load_dwordx4 s[96:99], s[0:1], 56")
    I("s_load_dwordx2 s[46:47], s[0:1], 40")
    I("s_load_dwordx2 s[100:101], s[0:1], 80")
    I(f"v_lshlrev_b32 v{vTid4}, 2, v0")
    I(f"v_lshlrev_b32 v{vTid16}, 4, v0")
    I(f"v_mov_b32 v{vT}, 0")
    I(f"v_cmp_gt_u32 vcc, {EPB+4}, v0")
    I("s_mov_b64 exec, vcc")
    I(f"ds_write_b32 v{vTid4}, v{vT} offset:{P2_CNT}")
    I("s_mov_b64 exec, -1")
    I(f"v_and_b32 v{vLane}, 63, v0")
    I(f"v_lshlrev_b32 v{vLane8}, 3, v{vLane}")
    I(f"v_mov_b32 v{vOne}, 1")
    I(f"v_lshrrev_b32 v{vT}, 6, v0")
    I(f"v_and_b32 v{vL16}, 15, v0")
    I(f"v_readfirstlane_b32 s3, v{vT}")
    for i in range(4):
        I(f"v_mov_b32 v{vAcc+i}, 0")
    I(f"v_lshl_add_u32 v{vT+1}, v{vT}, 4, v{vL16}")
    I(f"v_lshlrev_b32 v{vRO}, 10, v{vT+1}")
    I(f"s_lshl_b32 s{sT0+0}, s2, 2") if False else None
    I(f"v_mul_u32_u24 v{vRunBase}, 0x14000, v{vT+1}")
    I(f"v_lshl_add_u32 v{vRO}, s2, 2, v{vRO}")
    I(f"v_lshlrev_b32 v{vT+2}, 3, v0")
    I(f"v_lshlrev_b32 v{vT+3}, 1, v0")
    I("s_mul_i32 s28, s2, 5120")
    I("s_mul_i32 s29, s2, 1280")
    I("s_waitcnt lgkmcnt(0)")
    srd(sREC, REC_BYTES, REC_OFF)
    srd(sMD, MD_BYTES, MD_OFF)
    srd(sOFF, OFFS_BYTES, OFFS_OFF)
    srd(sM, E * 8)
    srd(sDIST, E * 2)
    I(f"buffer_load_ushort v{vDist}, v{vT+3}, s[{sDIST}:{sDIST+3}], s29 offen")
    I(f"buffer_load_dwordx2 {vr(vM,2)}, v{vT+2}, s[{sM}:{sM+3}], s28 offen")
    I(f"s_load_dwordx16 s[{sW}:{sW+15}], s[98:99], 0")
    I(f"s_load_dwordx16 s[{sW+16}:{sW+31}], s[98:99], 64")
    I(f"s_load_dwordx16 s[{sW+32}:{sW+47}], s[98:99], 128")
    I("s_load_dwordx4 s[24:27], s[46:47], 0")
    I(f"s_mov_b32 s{sBase}, 0")
    I(f"s_mov_b32 s{sFav}, -1")
    I("s_barrier")
    stamp(115, 1)
    L(f"{name}_round")
    I(f"buffer_load_dwordx2 {vr(vO,2)}, v{vRO}, s[{sOFF}:{sOFF+3}], 0 offen")
    I(f"v_cmp_eq_u32 vcc, s{sFav}, v{vL16}")
    I(f"v_mov_b32 v{vT}, s{sBase}")
    I("s_nop 0")
    I(f"v_cndmask_b32_e64 v{vT+1}, 0, {BLK}, vcc")
    I(f"v_add_u32 v{vT}, v{vT}, v{vT+1}")
    I("s_waitcnt vmcnt(0)")
    stamp(115, 2)
    I(f"v_sub_u32 v{vRem}, v{vO+1}, v{vO}")
    I(f"v_add_u32 v{vT+1}, v{vO}, v{vT}")
    I(f"v_sub_u32 v{vRem}, v{vRem}, v{vT}")
    I(f"v_lshl_add_u32 v{vSoff}, v{vT+1}, 3, v{vRunBase}")
    I(f"v_med3_i32 v{vN}, v{vRem}, 0, {BLK}")
    I("s_nop 0")
    for s in range(16):
        I(f"v_add_u32_dpp v{vREC+2*s}, v{vSoff}, v{vLane8} row_newbcast:{s} row_mask:0xf bank_mask:0xf")
        I(f"v_readlane_b32 s{sN+s}, v{vN}, {s}")
    for s in range(16):
        I(f"s_bfm_b64 exec, s{sN+s}, 0")
        I(f"buffer_load_dwordx2 {vr(vREC+2*s,2)}, v{vREC+2*s}, s[{sREC}:{sREC+3}], 0 offen {RLF}")
    I("s_mov_b64 exec, -1")
    I(f"s_mov_b32 s{sN+16}, 0")
    I(f"s_mov_b32 s{sT0}, 0")
    I(f"v_cmp_lt_i32 vcc, {BLK}, v{vRem}")
    I(f"s_cmp_lg_u32 s{sBase}, 0")
    I(f"s_cbranch_scc1 {name}_no16")
    I("s_and_b64 vcc, vcc, 0xffff")
    I(f"s_cbranch_scc0 {name}_no16")
    I(f"s_ff1_i32_b64 s{sFav}, vcc")
    I(f"v_readlane_b32 s{sN+16}, v{vRem}, s{sFav}")
    I(f"v_readlane_b32 s{sT0}, v{vSoff}, s{sFav}")
    I(f"v_cmp_eq_u32 vcc, s{sFav}, v{vL16}")
    I(f"s_sub_u32 s{sN+16}, s{sN+16}, {BLK}")
    I(f"s_min_u32 s{sN+16}, s{sN+16}, {BLK}")
    I(f"v_cndmask_b32_e64 v{vT+1}, 0, {BLK}, vcc")
    I(f"s_add_u32 s{sT0}, s{sT0}, {BLK*8}")
    I(f"v_sub_u32 v{vRem}, v{vRem}, v{vT+1}")
    L(f"{name}_no16")
    I(f"v_add_u32 v{vREC+32}, s{sT0}, v{vLane8}")
    I(f"v_cmp_lt_i32 vcc, {BLK}, v{vRem}")
    I(f"s_bfm_b64 exec, s{sN+16}, 0")
    I(f"buffer_load_dwordx2 {vr(vREC+32,2)}, v{vREC+32}, s[{sREC}:{sREC+3}], 0 offen {RLF}")
    I("s_mov_b64 exec, -1")
    I("s_and_b64 vcc, vcc, 0xffff")
    I(f"s_cbranch_scc0 {name}_nomore")
    I(f"v_mov_b32 v{vT}, {P2_FLAG}")
    I(f"ds_write_b32 v{vT}, v{vOne}")
    L(f"{name}_nomore")
    I(f"s_cmp_lg_u32 s{sBase}, 0")
    I(f"s_cbranch_scc1 {name}_nopro")
    I("s_cmp_ge_u32 s3, 10")
    I(f"s_cbranch_scc1 {name}_nopro")
    g = 48
    vRB = g
    vG = g + 4
    vE = g + 16
    I("s_waitcnt lgkmcnt(0)")
    I(f"v_lshlrev_b32 v{vDist}, 16, v{vDist}")
    for p in range(4):
        a, b_, pk = vE + 4*p, vE + 4*p + 1, vE + 4*p + 2
        I(f"s_lshl_b32 s{sT1}, s{24+p}, 16")
        I(f"s_and_b32 s{sT2}, s{24+p}, 0xffff0000")
        I(f"v_subrev_f32 v{a}, s{sT1}, v{vDist}")
        I(f"v_subrev_f32 v{b_}, s{sT2}, v{vDist}")
        I(f"v_cvt_pk_bf16_f32 v{pk}, v{a}, v{b_}")
        I(f"v_lshlrev_b32 v{a}, 16, v{pk}")
        I(f"v_and_b32 v{b_}, 0xffff0000, v{pk}")
        I(f"v_mul_f32 v{a}, v{a}, v{a}")
        I(f"v_mul_f32 v{b_}, v{b_}, v{b_}")
        I(f"v_cvt_pk_bf16_f32 v{pk}, v{a}, v{b_}")
        I(f"v_lshlrev_b32 v{a}, 16, v{pk}")
        I(f"v_and_b32 v{b_}, 0xffff0000, v{pk}")
        I(f"v_mul_f32 v{a}, 0xc1200000, v{a}")
        I(f"v_mul_f32 v{b_}, 0xc1200000, v{b_}")
        I(f"v_cvt_pk_bf16_f32 v{pk}, v{a}, v{b_}")
        I(f"v_lshlrev_b32 v{a}, 16, v{pk}")
        I(f"v_and_b32 v{b_}, 0xffff0000, v{pk}")
        I(f"v_mul_f32 v{a}, 0x3fb8aa3b, v{a}")
        I(f"v_mul_f32 v{b_}, 0x3fb8aa3b, v{b_}")
        I(f"v_exp_f32 v{a}, v{a}")
        I(f"v_exp_f32 v{b_}, v{b_}")
        I("s_nop 0")
        I(f"v_cvt_pk_bf16_f32 v{vRB+p}, v{a}, v{b_}")
    tmps = [sT0, sT1, sT2]
    ti = 0
    for p in range(4):
        for l in range(3):
            for dd in range(2):
                A = sW + (6*p + l) * 2 + dd
                B = sW + (6*p + 3 + l) * 2 + dd
                for hi in range(2):
                    d = 2*dd + hi
                    t = tmps[ti % 3]; ti += 1
                    I(f"s_pack_{'hh' if hi else 'll'}_b32_b16 s{t}, s{A}, s{B}")
                    if p == 0:
                        I(f"v_dot2_f32_bf16 v{vG+4*l+d}, v{vRB+p}, s{t}, 0")
                    else:
                        I(f"v_dot2c_f32_bf16 v{vG+4*l+d}, s{t}, v{vRB+p}")
    I(f"s_load_dwordx16 s[{sW}:{sW+15}], s[96:97], 0")
    I(f"s_load_dwordx8 s[{sW+16}:{sW+23}], s[100:101], 0")
    pa = vE
    for d in range(4):
        I(f"v_cvt_pk_bf16_f32 v{pa+d}, v{vG+d}, v{vG+4+d}")
    I(f"v_cvt_pk_bf16_f32 v{pa+4}, v{vG+8}, v{vG+9}")
    I(f"v_cvt_pk_bf16_f32 v{pa+5}, v{vG+10}, v{vG+11}")
    I(f"ds_write_b128 v{vTid16}, {vr(pa,4)} offset:{P2_GA}")
    I(f"ds_write_b64 v{vTid16}, {vr(pa+4,2)} offset:{P2_GB}")
    I("s_waitcnt lgkmcnt(0)")
    for p in range(4):
        for dd in range(2):
            A = sW + (2*p) * 2 + dd
            B = sW + (2*p + 1) * 2 + dd
            for hi in range(2):
                d = 2*dd + hi
                t = tmps[ti % 3]; ti += 1
                I(f"s_pack_{'hh' if hi else 'll'}_b32_b16 s{t}, s{A}, s{B}")
                if p == 0:
                    I(f"v_dot2_f32_bf16 v{vG+d}, v{vRB+p}, s{t}, 0")
                else:
                    I(f"v_dot2c_f32_bf16 v{vG+d}, s{t}, v{vRB+p}")
    I("s_nop 2")
    I(f"v_cvt_pk_bf16_f32 v{vGate}, v{vG}, v{vG+1}")
    I(f"v_cvt_pk_bf16_f32 v{vGate+1}, v{vG+2}, v{vG+3}")
    for dd in range(2):
        I(f"s_pack_ll_b32_b16 s{88+4*dd+0}, s{64+dd}, s{66+dd}")
        I(f"s_pack_ll_b32_b16 s{88+4*dd+1}, s{68+dd}, s{70+dd}")
        I(f"s_pack_hh_b32_b16 s{88+4*dd+2}, s{64+dd}, s{66+dd}")
        I(f"s_pack_hh_b32_b16 s{88+4*dd+3}, s{68+dd}, s{70+dd}")
    L(f"{name}_nopro")
    I("s_waitcnt lgkmcnt(0)")
    stamp(115, 3)
    I(f"s_load_dwordx2 s[{sOUT}:{sOUT+1}], s[0:1], 88")
    I(f"s_mov_b32 s{sOUT+2}, {E*8}")
    I(f"s_mov_b32 s{sOUT+3}, {W3:#x}")
    for s in range(NSLOT):
        t = vT + (s % 4)
        I(f"s_bfm_b64 exec, s{sN+s}, 0")
        I(f"s_waitcnt vmcnt({NSLOT-1-s})")
        I(f"v_lshrrev_b32 v{t}, 21, v{vREC+2*s}")
        I(f"v_lshlrev_b32 v{t}, 2, v{t}")
        I(f"ds_add_rtn_u32 v{vRK+s}, v{t}, v{vOne} offset:{P2_CNT}")
    def gather(q):
        t = vT + 8 + (q % 2)
        w0 = vREC + 2*q
        I(f"s_bfm_b64 exec, s{sN+q}, 0")
        I(f"v_and_b32 v{t}, 0x1fffff, v{w0}")
        I(f"buffer_load_dwordx2 {vr(vMD+2*(q%RING),2)}, v{t}, s[{sMD}:{sMD+3}], 0 offen")
        I(f"v_lshrrev_b32 v{w0}, 17, v{w0}")
        I(f"v_and_b32 v{w0}, 0x3ff0, v{w0}")
    for q in range(D):
        gather(q)
    I("s_mov_b64 exec, -1")
    I("s_waitcnt lgkmcnt(0)")
    stamp(115, 4)
    I("s_barrier")
    stamp(115, 5)
    I("s_cmp_lg_u32 s3, 0")
    I(f"s_cbranch_scc1 {name}_noscan")
    c = vGS
    ee = vT
    I(f"v_lshlrev_b32 v{vT}, 2, v{vLane}")
    for j in range(10):
        I(f"ds_read_b32 v{c+j}, v{vT} offset:{P2_CNT+256*j}")
    I(f"v_lshlrev_b32 v{vT+1}, 4, v{vLane}")
    I("s_waitcnt lgkmcnt(0)")
    for j in range(10):
        I(f"v_lshl_add_u32 v{c+j}, v{c+j}, 3, 8")
        I(f"v_and_b32 v{c+j}, -16, v{c+j}")
    I(f"v_mov_b32 v{vT+2}, 0")
    for j in range(10):
        I(f"v_add_u32 v{vT+3}, v{vT+2}, v{c+j}")
        I(f"v_mov_b32 v{c+j}, v{vT+2}")
        I(f"v_mov_b32 v{vT+2}, v{vT+3}")
    I(f"v_mov_b32 v{vT+3}, v{vT+2}")
    wave_scan(vT+3)
    I(f"v_sub_u32 v{vT+3}, v{vT+3}, v{vT+2}")
    I(f"v_add_u32 v{vT+3}, {P2_PAY}, v{vT+3}")
    for j in range(10):
        I(f"v_add_u32 v{c+j}, v{c+j}, v{vT+3}")
        I(f"ds_write_b32 v{vT+1}, v{c+j} offset:{P2_GB+1024*j+8}")
    I("s_waitcnt lgkmcnt(0)")
    L(f"{name}_noscan")
    I("s_barrier")
    stamp(115, 6)
    I(f"v_mov_b32 v{vT+4}, {P2_FLAG}")
    I(f"ds_read_b32 v{vT+5}, v{vT+4}")
    I(f"v_cmp_gt_u32 vcc, {EPB}, v0")
    I("s_mov_b64 exec, vcc")
    I(f"ds_read_b32 v{vT}, v{vTid4} offset:{P2_CNT}")
    I(f"ds_read_b32 v{vBase}, v{vTid16} offset:{P2_GB+8}")
    I(f"v_mov_b32 v{vT+2}, 0")
    I(f"v_mov_b32 v{vT+3}, 0")
    I("s_waitcnt lgkmcnt(0)")
    I(f"v_readfirstlane_b32 s{sMore}, v{vT+5}") if False else None
    I(f"v_add_u32 v{vN2}, 1, v{vT}")
    I(f"v_lshl_add_u32 v{vT+1}, v{vT}, 3, v{vBase}")
    I(f"v_and_b32 v{vT}, 1, v{vT}")
    I(f"v_lshrrev_b32 v{vN2}, 1, v{vN2}")
    I(f"v_cmp_eq_u32 vcc, 1, v{vT}")
    I("s_and_b64 exec, exec, vcc")
    I(f"ds_write_b64 v{vT+1}, {vr(vT+2,2)}")
    I("s_mov_b64 exec, -1")
    I(f"v_readfirstlane_b32 s{sMore}, v{vT+5}")
    def gread(s):
        I(f"s_bfm_b64 exec, s{sN+s}, 0")
        gs = vGS + 8*(s % 2)
        I(f"ds_read_b128 {vr(gs,4)}, v{vREC+2*s} offset:{P2_GA}")
        I(f"ds_read_b128 {vr(gs+4,4)}, v{vREC+2*s} offset:{P2_GB}")
    I("s_waitcnt lgkmcnt(0)")
    gread(0)
    for s in range(NSLOT):
        gs = vGS + 8*(s % 2)
        c1 = vREC + 2*s + 1
        md = vMD + 2*(s % RING)
        if s + D < NSLOT:
            gather(s + D)
        nyoung = 0
        if s + 1 < NSLOT:
            gread(s + 1)
            nyoung = 2
        if s > 0:
            nyoung += 1
        I(f"s_bfm_b64 exec, s{sN+s}, 0")
        q, c2, c3, c12, c3l, c3h = vT+4, vT+5, vT+6, vT+7, vT+4, vT+5
        I(f"v_mul_f32 v{q}, v{c1}, v{c1}")
        I(f"v_fma_f32 v{c2}, v{q}, 2.0, -1.0")
        I(f"v_fma_f32 v{c3}, v{c2}, 2.0, -1.0")
        I(f"v_cvt_pk_bf16_f32 v{c12}, v{c1}, v{c2}")
        I(f"v_mul_f32 v{c3}, v{c3}, v{c1}")
        I(f"v_cvt_pk_bf16_f32 v{c3l}, v{c3}, 0")
        I(f"v_cvt_pk_bf16_f32 v{c3h}, 0, v{c3}")
        I(f"s_waitcnt lgkmcnt({nyoung})")
        for d in range(4):
            I(f"v_dot2_f32_bf16 v{gs+d}, v{gs+d}, v{c12}, 0")
        I(f"v_dot2_f32_bf16 v{gs+0}, v{gs+4}, v{c3l}, v{gs+0}")
        I(f"v_dot2_f32_bf16 v{gs+1}, v{gs+4}, v{c3h}, v{gs+1}")
        I(f"v_dot2_f32_bf16 v{gs+2}, v{gs+5}, v{c3l}, v{gs+2}")
        I(f"v_dot2_f32_bf16 v{gs+3}, v{gs+5}, v{c3h}, v{gs+3}")
        I(f"v_lshl_add_u32 v{gs+6}, v{vRK+s}, 3, v{gs+6}")
        I(f"s_waitcnt vmcnt({min(D, NSLOT-1-s)})")
        I(f"v_lshlrev_b32 v{vT}, 16, v{md}")
        I(f"v_and_b32 v{vT+1}, 0xffff0000, v{md}")
        I(f"v_lshlrev_b32 v{vT+2}, 16, v{md+1}")
        I(f"v_and_b32 v{vT+3}, 0xffff0000, v{md+1}")
        I(f"v_pk_mul_f32 {vr(vT,2)}, {vr(vT,2)}, {vr(gs,2)}")
        I(f"v_pk_mul_f32 {vr(vT+2,2)}, {vr(vT+2,2)}, {vr(gs+2,2)}")
        I(f"v_cvt_pk_bf16_f32 v{md}, v{vT}, v{vT+1}")
        I(f"v_cvt_pk_bf16_f32 v{md+1}, v{vT+2}, v{vT+3}")
        I(f"ds_write_b64 v{gs+6}, {vr(md,2)}")
    I("s_mov_b64 exec, -1")
    I("s_waitcnt lgkmcnt(0)")
    stamp(115, 7)
    I("s_barrier")
    stamp(115, 8)
    I("s_cmp_ge_u32 s3, 10")
    I(f"s_cbranch_scc1 {name}_nored")
    X0, X1 = vGS, vGS + 4
    I("s_mov_b32 s97, 0x00003f80")
    I("s_mov_b32 s98, 0x3f800000")
    I(f"v_cmpx_lt_u32 vcc, 0, v{vN2}")
    I(f"s_cbranch_execz {name}_reddone")
    I(f"ds_read_b128 {vr(X0,4)}, v{vBase}")
    I(f"s_mov_b32 s{sT0}, 1")
    L(f"{name}_redloop")
    I(f"ds_read_b128 {vr(X1,4)}, v{vBase} offset:16")
    I("s_waitcnt lgkmcnt(1)")
    def accum(X):
        for r in range(2):
            I(f"v_dot2c_f32_bf16 v{vAcc+0}, s97, v{X+2*r}")
            I(f"v_dot2c_f32_bf16 v{vAcc+1}, s98, v{X+2*r}")
            I(f"v_dot2c_f32_bf16 v{vAcc+2}, s97, v{X+2*r+1}")
            I(f"v_dot2c_f32_bf16 v{vAcc+3}, s98, v{X+2*r+1}")
    accum(X0)
    I(f"v_cmpx_lt_u32 vcc, s{sT0}, v{vN2}")
    I(f"s_cbranch_execz {name}_reddone")
    I(f"ds_read_b128 {vr(X0,4)}, v{vBase} offset:32")
    I(f"s_add_u32 s{sT0}, s{sT0}, 1")
    I("s_waitcnt lgkmcnt(1)")
    accum(X1)
    I(f"v_add_u32 v{vBase}, 32, v{vBase}")
    I(f"v_cmpx_lt_u32 vcc, s{sT0}, v{vN2}")
    I(f"s_add_u32 s{sT0}, s{sT0}, 1")
    I(f"s_cbranch_execnz {name}_redloop")
    L(f"{name}_reddone")
    I("s_mov_b64 exec, -1")
    I("s_waitcnt lgkmcnt(0)")
    L(f"{name}_nored")
    stamp(115, 9)
    I(f"s_cmp_eq_u32 s{sMore}, 0")
    I(f"s_cbranch_scc1 {name}_final")
    I("s_barrier")
    I(f"v_mov_b32 v{vT}, 0")
    I(f"v_cmp_gt_u32 vcc, {EPB+4}, v0")
    I("s_mov_b64 exec, vcc")
    I(f"ds_write_b32 v{vTid4}, v{vT} offset:{P2_CNT}")
    I("s_mov_b64 exec, -1")
    I(f"s_add_u32 s{sBase}, s{sBase}, {BLK}")
    I("s_waitcnt lgkmcnt(0)")
    I("s_barrier")
    I(f"s_branch {name}_round")
    L(f"{name}_final")
    I("s_cmp_ge_u32 s3, 10")
    I(f"s_cbranch_scc1 {name}_fin2")
    f = vGS
    I(f"v_cvt_pk_bf16_f32 v{f}, v{vAcc}, v{vAcc+1}")
    I(f"v_cvt_pk_bf16_f32 v{f+1}, v{vAcc+2}, v{vAcc+3}")
    for d in range(4):
        I(f"v_dot2_f32_bf16 v{f+2+d}, v{f}, s{88+2*d}, 0")
    for d in range(4):
        I(f"v_dot2c_f32_bf16 v{f+2+d}, s{88+2*d+1}, v{f+1}")
    I("s_nop 2")
    I(f"v_cvt_pk_bf16_f32 v{f}, v{f+2}, v{f+3}")
    I(f"v_cvt_pk_bf16_f32 v{f+1}, v{f+4}, v{f+5}")
    I(f"v_lshlrev_b32 v{f+2}, 16, v{f}")
    I(f"v_and_b32 v{f+3}, 0xffff0000, v{f}")
    I(f"v_lshlrev_b32 v{f+4}, 16, v{f+1}")
    I(f"v_and_b32 v{f+5}, 0xffff0000, v{f+1}")
    I(f"v_lshlrev_b32 v{f+6}, 16, v{vGate}")
    I(f"v_and_b32 v{f+7}, 0xffff0000, v{vGate}")
    I(f"v_lshlrev_b32 v{f+8}, 16, v{vGate+1}")
    I(f"v_and_b32 v{f+9}, 0xffff0000, v{vGate+1}")
    for d in range(4):
        I(f"v_mul_f32 v{f+2+d}, v{f+2+d}, v{f+6+d}")
    I(f"v_cvt_pk_bf16_f32 v{f}, v{f+2}, v{f+3}")
    I(f"v_cvt_pk_bf16_f32 v{f+1}, v{f+4}, v{f+5}")
    I(f"v_lshlrev_b32 v{f+2}, 16, v{f}")
    I(f"v_and_b32 v{f+3}, 0xffff0000, v{f}")
    I(f"v_lshlrev_b32 v{f+4}, 16, v{f+1}")
    I(f"v_and_b32 v{f+5}, 0xffff0000, v{f+1}")
    I(f"v_lshlrev_b32 v{f+6}, 16, v{vM}")
    I(f"v_and_b32 v{f+7}, 0xffff0000, v{vM}")
    I(f"v_lshlrev_b32 v{f+8}, 16, v{vM+1}")
    I(f"v_and_b32 v{f+9}, 0xffff0000, v{vM+1}")
    for d in range(4):
        I(f"v_add_f32 v{f+2+d}, v{f+2+d}, v{f+6+d}")
    I(f"v_cvt_pk_bf16_f32 v{f}, v{f+2}, v{f+3}")
    I(f"v_cvt_pk_bf16_f32 v{f+1}, v{f+4}, v{f+5}")
    I(f"v_lshlrev_b32 v{f+2}, 3, v0")
    I("s_mul_i32 s28, s2, 5120")
    I(f"buffer_store_dwordx2 {vr(f,2)}, v{f+2}, s[{sOUT}:{sOUT+3}], s28 offen")
    L(f"{name}_fin2")
    stamp(115, 10)
    if TS:
        I("s_waitcnt vmcnt(0)")
    stamp(115, 11)
    stamp_out(115, 1, 94, 4)
    L(f"{name}_end")
    I("s_endpgm")

def desc(name, vgpr, sgpr=102):
    acc = (vgpr + 3) // 4 * 4
    e(f".amdhsa_kernel {name}")
    e(f"  .amdhsa_next_free_vgpr {vgpr}")
    e(f"  .amdhsa_next_free_sgpr {sgpr}")
    e(f"  .amdhsa_accum_offset {acc}")
    e("  .amdhsa_group_segment_fixed_size 0")
    e("  .amdhsa_kernarg_size 112")
    e("  .amdhsa_user_sgpr_count 2")
    e("  .amdhsa_user_sgpr_kernarg_segment_ptr 1")
    e("  .amdhsa_system_sgpr_workgroup_id_x 1")
    e(".end_amdhsa_kernel")

K1 = "gs_bin_kernel"
K2 = "gather_scatter__molecular_angular_gemnet__graph_kernel"

def main(path):
    e("; GemNet triplet gather/scatter: pass 1 bins triplets by output edge block, pass 2 reduces per block")
    e(f"; @launch kernel={K1} grid=({NB},1,1) block=(1024,1,1) lds={P1_LDS}")
    e(f"; @launch kernel={K2} grid=({NB},1,1) block=(1024,1,1) lds={P2_LDS}")
    e('.amdgcn_target "amdgcn-amd-amdhsa--gfx950"')
    e(".text")
    e(f".globl {K1}")
    e(f".globl {K2}")
    p1(K1)
    p2(K2)
    e('.section .rodata,"a"')
    e(".p2align 6")
    desc(K1, 92)
    e(".p2align 6")
    desc(K2, 116)
    open(path, "w").write("\n".join(x for x in out if x is not None) + "\n")

if __name__ == "__main__":
    main(sys.argv[1] if len(sys.argv) > 1 else "gather_scatter__molecular_angular_gemnet__graph.s")
```

```python
import sys, os

E = 160000
T = 2560000
NB = 256
EPB = 625
CH = 10000
HC = 32
HXG = 0x0
HYG = 0x800000
TXG = 0xC00000
TYG = 0x1600000
OFFS_OFF = 0x1B00000
WS_USED = OFFS_OFF + NB * NB * 4
W3 = 0x00020000
NH = 8
NT = 4
NS = NH + NT
WIN = NT * 64
CAPE = int(os.environ.get('CAPE', '25'))
RS = 5000

def env(k, d): return os.environ.get(k, d)
LDF = env('LDF', '')
STF = env('STF', 'sc1')
RLF = env('RLF', '')
GLF = env('GLF', '')
TBF = env('TBF', '')
P1S = env('P1S', 'O0,O1,O2|I0,A0|I1,A1,I2,A2')
TS = int(env('TS', '0'))
XCDMAP = int(env('XCDMAP', '1'))
DIST = int(env('DIST', '4'))
PRE = int(env('PRE', '4'))
LORD = env('LORD', 'HX0,DI,CNT,HX1,HY0,HY1,M')
TORD = int(env('TORD', '0'))
TS_OFF = 0x2800000
out = []
def e(s=""):
    out.append(s)
def I(s):
    out.append("    " + s)
def L(s):
    out.append(s + ":")
def vr(a, n=1):
    return f"v{a}" if n == 1 else f"v[{a}:{a+n-1}]"
def sr(a, n=1):
    return f"s{a}" if n == 1 else f"s[{a}:{a+n-1}]"

class Trk:
    def __init__(self, name, mx):
        self.name, self.mx, self.q = name, mx, []
    def add(self, tag):
        self.q.append(tag)
    def wait(self, tag):
        if tag not in self.q:
            return
        i = len(self.q) - 1 - self.q[::-1].index(tag)
        n = len(self.q) - 1 - i
        self.q = self.q[i+1:]
        I(f"s_waitcnt {self.name}({min(n, self.mx)})")
    def wait_all(self):
        self.q = []
        I(f"s_waitcnt {self.name}(0)")

def stamp(v, k):
    if not TS: return
    I("s_memrealtime vcc")
    I("s_waitcnt lgkmcnt(0)")
    I(f"v_writelane_b32 v{v}, vcc_lo, {k}")

def stamp_out(v, which, t0, srd_base):
    if not TS: return
    I("s_mov_b64 exec, -1")
    I(f"s_load_dwordx2 s[{srd_base}:{srd_base+1}], s[0:1], 104")
    I(f"v_lshrrev_b32 v{t0}, 6, v0")
    I(f"v_lshlrev_b32 v{t0}, 6, v{t0}")
    I(f"v_and_b32 v{t0+1}, 63, v0")
    I(f"v_lshl_add_u32 v{t0}, v{t0+1}, 2, v{t0}")
    I(f"s_lshl_b32 s3, s2, 10")
    I(f"s_add_u32 s3, s3, {TS_OFF + which*0x40000:#x}")
    I("s_waitcnt lgkmcnt(0)")
    I(f"s_mov_b32 s{srd_base+2}, {TS_OFF + 0x80000:#x}")
    I(f"s_mov_b32 s{srd_base+3}, {W3:#x}")
    I("s_mov_b64 exec, 0xffff")
    I(f"buffer_store_dword v{v}, v{t0}, s[{srd_base}:{srd_base+3}], s3 offen")

def wave_scan(reg):
    for sh in (1, 2, 4, 8):
        I("s_nop 1")
        I(f"v_add_u32_dpp v{reg}, v{reg}, v{reg} row_shr:{sh} row_mask:0xf bank_mask:0xf bound_ctrl:0")
    I("s_nop 1")
    I(f"v_add_u32_dpp v{reg}, v{reg}, v{reg} row_bcast:15 row_mask:0xa bank_mask:0xf")
    I("s_nop 1")
    I(f"v_add_u32_dpp v{reg}, v{reg}, v{reg} row_bcast:31 row_mask:0xc bank_mask:0xf")

def perm_id(dst, tmp):
    if XCDMAP:
        I(f"s_and_b32 s{dst}, s2, 7")
        I(f"s_lshl_b32 s{dst}, s{dst}, 5")
        I(f"s_lshr_b32 s{tmp}, s2, 3")
        I(f"s_add_u32 s{dst}, s{dst}, s{tmp}")
    else:
        I(f"s_mov_b32 s{dst}, s2")

def srd_off(base, total, off_reg):
    I(f"s_add_u32 s{base}, s{base}, s{off_reg}")
    I(f"s_addc_u32 s{base+1}, s{base+1}, 0")
    I(f"s_sub_u32 s{base+2}, {total}, s{off_reg}")
    I(f"s_mov_b32 s{base+3}, {W3:#x}")

def srd_whole(base, total):
    I(f"s_mov_b32 s{base+2}, {total}")
    I(f"s_mov_b32 s{base+3}, {W3:#x}")

P1_CNT = 0
P1_OFF = 1024
NQ = NB * HC + CH
P1_YB = 2048
P1_XB = P1_YB + NQ * 2
assert P1_XB % 16 == 0 and P1_XB + 16384 < 65536
P1_LDS = P1_XB + NQ * 4

def p1(name):
    e(".p2align 8")
    e(f".type {name},@function")
    L(name)
    I(f"s_cmp_ge_u32 s2, {NB}")
    I(f"s_cbranch_scc1 {name}_end")
    stamp(100, 0)
    VM = Trk("vmcnt", 63)
    sOUT, sIN, sANG, sWS = 4, 8, 12, 16
    I(f"s_load_dwordx2 s[{sOUT}:{sOUT+1}], s[0:1], 16")
    I(f"s_load_dwordx2 s[{sIN}:{sIN+1}], s[0:1], 8")
    I(f"s_load_dwordx2 s[{sANG}:{sANG+1}], s[0:1], 32")
    I(f"s_load_dwordx2 s[{sWS}:{sWS+1}], s[0:1], 104")
    vO, vI_, vA, vB, vR, vQ = 8, 18, 28, 36, 46, 56
    vT = 76
    vOFo = 90
    I("v_lshlrev_b32 v1, 4, v0")
    I("v_lshlrev_b32 v2, 3, v0")
    I("v_lshlrev_b32 v3, 2, v0")
    I("v_mov_b32 v4, 1")
    I("v_mov_b32 v5, 0")
    I("v_and_b32 v6, 0x3fc, v3")
    I(f"ds_write_b32 v6, v5 offset:{P1_CNT}")
    for k in range(4):
        I(f"v_mov_b32 v{vQ+k}, 0x3ff")
    I(f"ds_write_b128 v1, {vr(vQ,4)} offset:{P1_XB}")
    I(f"ds_write_b128 v1, {vr(vQ,4)} offset:{P1_XB+16384}")
    perm_id(3, 22)
    vX1, vX2, vA1a, vA2a = 84, 85, 86, 87
    I(f"v_add_u32 v{vX1}, 16384, v1")
    I(f"v_add_u32 v{vX2}, 32768, v2")
    I(f"v_add_u32 v{vA1a}, 8192, v2")
    I(f"v_add_u32 v{vA2a}, 16384, v3")
    I(f"v_lshrrev_b32 v{vT+2}, 6, v0")
    I("s_mul_i32 s22, s3, 40000")
    I("s_mul_i32 s23, s3, 20000")
    I("s_movk_i32 s21, 0xfd8f")
    I(f"v_readfirstlane_b32 s20, v{vT+2}")
    I("s_waitcnt lgkmcnt(0)")
    srd_off(sOUT, T * 4, 22)
    srd_off(sIN, T * 4, 22)
    srd_off(sANG, T * 2, 23)
    srd_whole(sWS, WS_USED)
    def ld(nm):
        tx = {
         'O0': f"buffer_load_dwordx4 {vr(vO,4)}, v1, s[{sOUT}:{sOUT+3}], 0 offen {LDF}",
         'O1': f"buffer_load_dwordx4 {vr(vO+4,4)}, v{vX1}, s[{sOUT}:{sOUT+3}], 0 offen {LDF}",
         'O2': f"buffer_load_dwordx2 {vr(vO+8,2)}, v{vX2}, s[{sOUT}:{sOUT+3}], 0 offen {LDF}",
         'I0': f"buffer_load_dwordx4 {vr(vI_,4)}, v1, s[{sIN}:{sIN+3}], 0 offen {LDF}",
         'A0': f"buffer_load_dwordx2 {vr(vA,2)}, v2, s[{sANG}:{sANG+3}], 0 offen {LDF}",
         'I1': f"buffer_load_dwordx4 {vr(vI_+4,4)}, v{vX1}, s[{sIN}:{sIN+3}], 0 offen {LDF}",
         'A1': f"buffer_load_dwordx2 {vr(vA+2,2)}, v{vA1a}, s[{sANG}:{sANG+3}], 0 offen {LDF}",
         'I2': f"buffer_load_dwordx2 {vr(vI_+8,2)}, v{vX2}, s[{sIN}:{sIN+3}], 0 offen {LDF}",
         'A2': f"buffer_load_dword v{vA+4}, v{vA2a}, s[{sANG}:{sANG+3}], 0 offen {LDF}"}[nm]
        I(tx); VM.add(nm)
    sched = [[x for x in g.split(',') if x] for g in P1S.split('|')]
    for nm in sched[0]: ld(nm)
    I("s_barrier")
    for nm in sched[1]: ld(nm)
    stamp(100, 1)
    for j in range(10):
        if j == 0: VM.wait('O0')
        if j == 4: VM.wait('O1')
        if j == 8:
            I("v_cmp_gt_u32 vcc, 0x388, v0")
            VM.wait('O2')
            I("s_mov_b64 s[100:101], vcc")
            I("s_mov_b64 exec, vcc")
        t = vT + (j % 4)
        I(f"v_mul_hi_u32_u24 v{t}, 0x68db8c, v{vO+j}")
        I(f"v_lshlrev_b32 v{vB+j}, 2, v{t}")
        I(f"v_mad_i32_i24 v{vO+j}, v{t}, s21, v{vO+j}")
        I(f"ds_add_rtn_u32 v{vR+j}, v{vB+j}, v4 offset:{P1_CNT}")
        I(f"v_lshlrev_b32 v{vQ+j}, 5, v{t}")
    I("s_mov_b64 exec, -1")
    I("s_waitcnt lgkmcnt(0)")
    stamp(100, 3)
    I("s_barrier")
    for nm in sched[2]: ld(nm)
    stamp(100, 4)
    c, o = 80, 92
    I("v_and_b32 v6, 63, v0")
    I("v_lshlrev_b32 v6, 4, v6")
    I(f"ds_read_b128 {vr(c,4)}, v6 offset:{P1_CNT}")
    mk = [32, 34, 36, 38, 40, 42, 44, 46, 48, 50]
    for j in range(10):
        I(f"v_cmp_gt_u32_e64 s[{mk[j]}:{mk[j]+1}], {HC}, v{vR+j}")
        I(f"v_lshrrev_b32 v{vT+(j%4)}, 5, v{vQ+j}")
        I(f"v_add_u32 v{vT+(j%4)}, v{vT+(j%4)}, v{vR+j}")
        I(f"v_and_or_b32 v{vQ+j}, v{vT+(j%4)}, 31, v{vQ+j}")
    I("s_waitcnt lgkmcnt(0)")
    for k in range(4):
        I(f"v_subrev_u32 v{c+k}, {HC}, v{c+k}")
    for k in range(4):
        I(f"v_max_i32 v{c+k}, 0, v{c+k}")
    I(f"v_add_u32 v{o+2}, v{c}, v{c+1}")
    I(f"v_add_u32 v{o+3}, v{o+2}, v{c+2}")
    I(f"v_add_u32 v88, v{o+3}, v{c+3}")
    I("v_mov_b32 v89, v88")
    wave_scan(89)
    I(f"v_sub_u32 v{o}, v89, v88")
    I(f"v_readlane_b32 s23, v89, 63")
    I(f"v_add_u32 v{o+1}, v{o}, v{c}")
    I(f"v_add_u32 v{o+2}, v{o}, v{o+2}")
    I(f"v_add_u32 v{o+3}, v{o}, v{o+3}")
    for k in range(4):
        I(f"v_lshl_or_b32 v{66+k}, v{c+k}, 16, v{o+k}")
    for k in range(4):
        I(f"v_add_u32 v{o+k}, {NB*HC - HC}, v{o+k}")
    I(f"ds_write_b128 v6, {vr(o,4)} offset:{P1_OFF}")
    for j in range(10):
        if j == 8:
            I("s_mov_b64 exec, s[100:101]")
        I(f"ds_read_b32 v{vB+j}, v{vB+j} offset:{P1_OFF}")
    I("s_mov_b64 exec, -1")
    vOFo = 66
    I("s_waitcnt lgkmcnt(0)")
    for j in range(10):
        I(f"v_add_u32 v{vB+j}, v{vB+j}, v{vR+j}")
        I(f"v_cndmask_b32_e64 v{vB+j}, v{vB+j}, v{vQ+j}, s[{mk[j]}:{mk[j]+1}]")
    for j in range(10):
        I(f"v_lshlrev_b32 v{vQ+j}, 2, v{vB+j}")
        I(f"v_lshlrev_b32 v{vB+j}, 1, v{vB+j}")
    for g in range(3):
        js = range(4) if g == 0 else (range(4, 8) if g == 1 else range(8, 10))
        VM.wait(f'I{g}')
        if g == 2:
            I("s_mov_b64 exec, s[100:101]")
        for j in js:
            I(f"v_lshl_or_b32 v{vI_+j}, v{vI_+j}, 13, v{vO+j}")
            I(f"ds_write_b32 v{vQ+j}, v{vI_+j} offset:{P1_XB}")
        VM.wait(f'A{g}')
        for j in js:
            jj = j - (0, 4, 8)[g]
            areg = vA + (0, 2, 4)[g] + jj // 2
            I(f"ds_write_b16{'_d16_hi' if jj % 2 else ''} v{vB+j}, v{areg} offset:{P1_YB}")
    I("s_mov_b64 exec, -1")
    aT, aT2 = 78, 79
    I(f"v_add_u32 v{aT}, {P1_XB + NB*HC*4}, v1")
    I("s_lshl_b32 s24, s3, 15")
    I(f"s_add_u32 s24, s24, {HXG:#x}")
    I("s_lshl_b32 s25, s3, 14")
    I(f"s_add_u32 s25, s25, {HYG:#x}")
    I(f"s_add_u32 s26, s24, 16384")
    I("s_mul_i32 s27, s3, 40000")
    I(f"s_add_u32 s27, s27, {TXG:#x}")
    I("s_mul_i32 s28, s3, 20000")
    I(f"s_add_u32 s28, s28, {TYG:#x}")
    I("s_lshl_b32 s29, s23, 2")
    I("s_lshl_b32 s30, s23, 1")
    I("s_waitcnt lgkmcnt(0)")
    stamp(100, 5)
    I("s_barrier")
    stamp(100, 6)
    vC = 8
    I(f"ds_read_b128 {vr(vC,4)}, v1 offset:{P1_XB}")
    I(f"ds_read_b128 {vr(vC+4,4)}, v1 offset:{P1_XB+16384}")
    I(f"ds_read_b128 {vr(vC+8,4)}, v1 offset:{P1_YB}")
    I(f"ds_read_b128 {vr(vC+12,4)}, v{aT}")
    I(f"ds_read_b128 {vr(vC+16,4)}, v1 offset:{P1_YB + NB*HC*2}")
    I(f"v_cmp_gt_u32_e64 s[32:33], s29, v1")
    I(f"v_cmp_gt_u32_e64 s[34:35], s30, v1")
    I("s_waitcnt lgkmcnt(4)")
    I(f"buffer_store_dwordx4 {vr(vC,4)}, v1, s[{sWS}:{sWS+3}], s24 offen {STF}")
    I("s_waitcnt lgkmcnt(3)")
    I(f"buffer_store_dwordx4 {vr(vC+4,4)}, v1, s[{sWS}:{sWS+3}], s26 offen {STF}")
    I("s_waitcnt lgkmcnt(2)")
    I(f"buffer_store_dwordx4 {vr(vC+8,4)}, v1, s[{sWS}:{sWS+3}], s25 offen {STF}")
    I("s_waitcnt lgkmcnt(1)")
    I("s_mov_b64 exec, s[32:33]")
    I(f"buffer_store_dwordx4 {vr(vC+12,4)}, v1, s[{sWS}:{sWS+3}], s27 offen {STF}")
    I("s_waitcnt lgkmcnt(0)")
    I("s_mov_b64 exec, s[34:35]")
    I(f"buffer_store_dwordx4 {vr(vC+16,4)}, v1, s[{sWS}:{sWS+3}], s28 offen {STF}")
    I("s_mov_b64 exec, -1")
    I("s_cmp_le_u32 s29, 16384")
    I(f"s_cbranch_scc1 {name}_done")
    I(f"v_add_u32 v{aT2}, 16384, v1")
    I(f"v_add_u32 v6, 16384, v{aT}")
    I(f"ds_read_b128 {vr(vC+20,4)}, v6")
    I(f"ds_read_b128 {vr(vC+24,4)}, v6 offset:16384")
    I(f"ds_read_b128 {vr(vC+28,4)}, v{aT2} offset:{P1_YB + NB*HC*2}")
    I(f"v_cmp_gt_u32_e64 s[32:33], s29, v{aT2}")
    I(f"v_cmp_gt_u32_e64 s[34:35], s30, v{aT2}")
    I(f"v_add_u32 v6, 16384, v{aT2}")
    I(f"v_cmp_gt_u32_e64 s[36:37], s29, v6")
    I("s_waitcnt lgkmcnt(0)")
    I("s_mov_b64 exec, s[32:33]")
    I(f"buffer_store_dwordx4 {vr(vC+20,4)}, v{aT2}, s[{sWS}:{sWS+3}], s27 offen {STF}")
    I("s_mov_b64 exec, s[36:37]")
    I(f"buffer_store_dwordx4 {vr(vC+24,4)}, v6, s[{sWS}:{sWS+3}], s27 offen {STF}")
    I("s_mov_b64 exec, s[34:35]")
    I(f"buffer_store_dwordx4 {vr(vC+28,4)}, v{aT2}, s[{sWS}:{sWS+3}], s28 offen {STF}")
    I("s_mov_b64 exec, -1")
    L(f"{name}_done")
    I("s_cmp_lg_u32 s20, 0")
    I(f"s_cbranch_scc1 {name}_nooffs")
    I("s_lshl_b32 s22, s3, 2")
    I(f"s_add_u32 s22, s22, {OFFS_OFF:#x}")
    I("v_lshlrev_b32 v6, 12, v0")
    for k in range(4):
        I(f"buffer_store_dword v{vOFo+k}, v6, s[{sWS}:{sWS+3}], s22 offen offset:{1024*k} {TBF}")
    L(f"{name}_nooffs")
    stamp(100, 7)
    if TS:
        I("s_waitcnt vmcnt(0)")
    stamp(100, 8)
    stamp_out(100, 0, 6, 24)
    L(f"{name}_end")
    I("s_endpgm")

P2_CNT = 0
P2_FLAG = 2560
P2_OVF = 2576
P2_GA = P2_OVF + EPB * 16
P2_GB = P2_GA + EPB * 16
P2_LST = (P2_GB + EPB * 8 + 15) // 16 * 16
P2_PAY = P2_LST + 16 * WIN
P2_LDS = P2_PAY + (CAPE + 1) * RS
assert P2_LDS <= 163840, P2_LDS

def edge_tables(vDist, sC, sWB, sWR, vGAo, vGBo, vRB, vG, a, b_, pk, gt, tmps):
    I(f"v_lshlrev_b32 v{vDist}, 16, v{vDist}")
    t0, t1 = tmps[0], tmps[1]
    for p in range(4):
        I(f"s_lshl_b32 s{t0}, s{sC+p}, 16")
        I(f"s_and_b32 s{t1}, s{sC+p}, 0xffff0000")
        I(f"v_subrev_f32 v{a}, s{t0}, v{vDist}")
        I(f"v_subrev_f32 v{b_}, s{t1}, v{vDist}")
        I(f"v_cvt_pk_bf16_f32 v{pk}, v{a}, v{b_}")
        I(f"v_lshlrev_b32 v{a}, 16, v{pk}")
        I(f"v_and_b32 v{b_}, 0xffff0000, v{pk}")
        I(f"v_mul_f32 v{a}, v{a}, v{a}")
        I(f"v_mul_f32 v{b_}, v{b_}, v{b_}")
        I(f"v_cvt_pk_bf16_f32 v{pk}, v{a}, v{b_}")
        I(f"v_lshlrev_b32 v{a}, 16, v{pk}")
        I(f"v_and_b32 v{b_}, 0xffff0000, v{pk}")
        I(f"v_mul_f32 v{a}, 0xc1200000, v{a}")
        I(f"v_mul_f32 v{b_}, 0xc1200000, v{b_}")
        I(f"v_cvt_pk_bf16_f32 v{pk}, v{a}, v{b_}")
        I(f"v_lshlrev_b32 v{a}, 16, v{pk}")
        I(f"v_and_b32 v{b_}, 0xffff0000, v{pk}")
        I(f"v_mul_f32 v{a}, 0x3fb8aa3b, v{a}")
        I(f"v_mul_f32 v{b_}, 0x3fb8aa3b, v{b_}")
        I(f"v_exp_f32 v{a}, v{a}")
        I(f"v_exp_f32 v{b_}, v{b_}")
        I("s_nop 0")
        I(f"v_cvt_pk_bf16_f32 v{vRB+p}, v{a}, v{b_}")
    ti = 0
    for p in range(4):
        for l in range(3):
            for dd in range(2):
                A = sWB + (6*p + l) * 2 + dd
                B = sWB + (6*p + 3 + l) * 2 + dd
                for hi in range(2):
                    d = 2*dd + hi
                    t = tmps[ti % 3]; ti += 1
                    I(f"s_pack_{'hh' if hi else 'll'}_b32_b16 s{t}, s{A}, s{B}")
                    if p == 0:
                        I(f"v_dot2_f32_bf16 v{vG+4*l+d}, v{vRB+p}, s{t}, 0")
                    else:
                        I(f"v_dot2c_f32_bf16 v{vG+4*l+d}, s{t}, v{vRB+p}")
    for p in range(4):
        for dd in range(2):
            A = sWR + (2*p) * 2 + dd
            B = sWR + (2*p + 1) * 2 + dd
            for hi in range(2):
                d = 2*dd + hi
                t = tmps[ti % 3]; ti += 1
                I(f"s_pack_{'hh' if hi else 'll'}_b32_b16 s{t}, s{A}, s{B}")
                if p == 0:
                    I(f"v_dot2_f32_bf16 v{gt+d}, v{vRB+p}, s{t}, 0")
                else:
                    I(f"v_dot2c_f32_bf16 v{gt+d}, s{t}, v{vRB+p}")
    for d in range(4):
        I(f"v_cvt_pk_bf16_f32 v{vGAo+d}, v{vG+d}, v{vG+4+d}")
    I(f"v_cvt_pk_bf16_f32 v{vGBo}, v{vG+8}, v{vG+9}")
    I(f"v_cvt_pk_bf16_f32 v{vGBo+1}, v{vG+10}, v{vG+11}")
    I(f"v_cvt_pk_bf16_f32 v{vGBo+2}, v{gt}, v{gt+1}")
    I(f"v_cvt_pk_bf16_f32 v{vGBo+3}, v{gt+2}, v{gt+3}")

def p2(name):
    e(".p2align 8")
    e(f".type {name},@function")
    L(name)
    sWS, sM, sOUT, sDI = 4, 8, 12, 16
    sPD = 20
    sC, sWB, sWR = 28, 36, 84
    sWUP, sWDP = 16, 24
    sRAW = 68
    sWave, sW0, sNW, sNwin, sT0, sMore = 32, 34, 35, 36, 37, 39
    sMASK = 40
    sTX, sTY, s3ff, sRS = 64, 65, 66, 67
    sEM = 100
    vLane, vOne, vE8 = 1, 4, 5
    vM, vGate, vAcc = 6, 8, 10
    vLrd, vCnt, vPre, vD, vK, vR16 = 14, 15, 16, 17, 18, 19
    vDist = 20
    vTid4, vNe = 22, 23
    vMD, vL8, vRK = 24, 48, 60
    vHX, vTXr, vHY, vTYr = 72, 80, 84, 88
    vGS, vT = 92, 108
    vGAl, vGBl = 92, 96
    SV = 120
    VM = Trk("vmcnt", 63)
    LG = Trk("lgkmcnt", 15)
    def xreg(s): return vHX + s if s < NH else vTXr + (s - NH)
    def msk(s): return f"s[{sMASK+2*s}:{sMASK+2*s+1}]"
    I(f"s_cmp_ge_u32 s2, {NB}")
    I(f"s_cbranch_scc1 {name}_end")
    stamp(SV, 0)
    I(f"s_load_dwordx2 s[{sWS}:{sWS+1}], s[0:1], 104")
    I(f"s_load_dwordx2 s[{sM}:{sM+1}], s[0:1], 0")
    I(f"s_load_dwordx2 s[{sDI}:{sDI+1}], s[0:1], 24")
    I(f"s_load_dwordx2 s[34:35], s[0:1], 40")
    I(f"s_load_dwordx4 s[96:99], s[0:1], 56")
    I(f"s_load_dwordx4 s[{sPD}:{sPD+3}], s[0:1], 72")
    I(f"s_load_dwordx2 s[{sOUT}:{sOUT+1}], s[0:1], 88")
    perm_id(3, 24)
    I(f"v_and_b32 v{vLane}, 63, v0")
    I(f"v_lshrrev_b32 v{vT}, 6, v0")
    I(f"v_lshrrev_b32 v{vR16}, 2, v{vLane}")
    I(f"v_lshlrev_b32 v{vTid4}, 2, v0")
    I(f"v_lshlrev_b32 v{vE8}, 3, v0")
    I(f"v_lshlrev_b32 v{vT+4}, 4, v0")
    I(f"v_readfirstlane_b32 s{sWave}, v{vT}")
    I(f"v_lshl_add_u32 v{vT+2}, v{vT}, 4, v{vR16}")
    I(f"v_mul_u32_u24 v{vD}, {CH}, v{vT+2}")
    I(f"s_lshl_b32 s24, s3, 8")
    I(f"s_add_u32 s24, s24, {OFFS_OFF//4:#x}")
    I(f"v_add_lshl_u32 v{vT+3}, v{vT+2}, s24, 2")
    I(f"v_and_b32 v{vK}, 3, v{vLane}")
    I(f"v_lshlrev_b32 v{vR16}, 4, v{vR16}")
    for i in range(4):
        I(f"v_mov_b32 v{vT+8+i}, 0")
    I(f"v_mov_b32 v{vOne}, 1")
    I(f"v_lshrrev_b32 v{vT+5}, 3, v0")
    I(f"v_and_b32 v{vT+6}, 7, v{vT+5}")
    I(f"v_lshl_add_u32 v{vT+6}, v{vT}, 4, v{vT+6}")
    I(f"v_lshlrev_b32 v{vT+5}, 15, v{vT+6}")
    I(f"v_and_b32 v{vT+6}, 7, v{vLane}")
    I(f"v_lshl_add_u32 v{vT+5}, v{vT+6}, 4, v{vT+5}")
    I(f"s_lshl_b32 s25, s3, 7")
    I(f"v_add_u32 v{vT+5}, s25, v{vT+5}")
    I(f"v_lshrrev_b32 v{vT+6}, 1, v{vT+5}")
    I(f"v_add_u32 v{vT+6}, {HYG:#x}, v{vT+6}")
    I(f"v_add_u32 v{vT+7}, {8*32768:#x}, v{vT+5}")
    I(f"v_add_u32 v{vT+1}, {8*16384:#x}, v{vT+6}")
    assert HXG == 0
    I(f"s_mul_i32 s26, s3, {EPB*8}")
    I(f"s_mul_i32 s27, s3, {EPB*2}")
    I(f"v_add_u32 v{vM}, s26, v{vE8}")
    I(f"v_lshl_add_u32 v{vDist}, v0, 1, s27")
    I(f"v_cmp_gt_u32 vcc, {EPB}, v0")
    I(f"s_mov_b64 s[{sEM}:{sEM+1}], vcc")
    I("s_mov_b64 exec, vcc")
    I(f"ds_write_b128 v{vT+4}, {vr(vT+8,4)} offset:{P2_OVF}")
    I("s_mov_b64 exec, -1")
    I(f"v_cmp_gt_u32 vcc, 644, v0")
    I("s_mov_b64 exec, vcc")
    I(f"ds_write_b32 v{vTid4}, v{vT+8} offset:{P2_CNT}")
    I("s_mov_b64 exec, -1")
    for i in range(4):
        I(f"v_mov_b32 v{vAcc+i}, 0")
    I(f"v_lshl_add_u32 v{vLrd}, v{vT}, 8, v{vLane}")
    I("s_waitcnt lgkmcnt(0)")
    I(f"s_cmp_ge_u32 s{sWave}, 10")
    I(f"s_cbranch_scc1 {name}_now")
    I(f"s_load_dwordx4 s[{sC}:{sC+3}], s[34:35], 0")
    I(f"s_load_dwordx16 s[{sWB}:{sWB+15}], s[98:99], 0")
    I(f"s_load_dwordx16 s[{sWB+16}:{sWB+31}], s[98:99], 64")
    I(f"s_load_dwordx16 s[{sWB+32}:{sWB+47}], s[98:99], 128")
    I(f"s_load_dwordx16 s[{sWR}:{sWR+15}], s[96:97], 0")
    I(f"s_load_dword s33, s[{sPD}:{sPD+1}], 0")
    I(f"s_load_dword s33, s[{sPD+2}:{sPD+3}], 0")
    L(f"{name}_now")
    srd_whole(sWS, WS_USED)
    srd_whole(sM, E * 8)
    srd_whole(sDI, E * 2)
    I(f"s_add_u32 s{sOUT}, s{sOUT}, s26")
    I(f"s_addc_u32 s{sOUT+1}, s{sOUT+1}, 0")
    I(f"s_mov_b32 s{sOUT+2}, {EPB*8}")
    I(f"s_mov_b32 s{sOUT+3}, {W3:#x}")
    first = {
      'CNT': f"buffer_load_dword v{vCnt}, v{vT+3}, s[{sWS}:{sWS+3}], 0 offen",
      'HX0': f"buffer_load_dwordx4 {vr(vHX,4)}, v{vT+5}, s[{sWS}:{sWS+3}], 0 offen {RLF}",
      'HX1': f"buffer_load_dwordx4 {vr(vHX+4,4)}, v{vT+7}, s[{sWS}:{sWS+3}], 0 offen {RLF}",
      'HY0': f"buffer_load_dwordx2 {vr(vHY,2)}, v{vT+6}, s[{sWS}:{sWS+3}], 0 offen {RLF}",
      'HY1': f"buffer_load_dwordx2 {vr(vHY+2,2)}, v{vT+1}, s[{sWS}:{sWS+3}], 0 offen {RLF}",
      'DI': f"buffer_load_ushort v{vDist}, v{vDist}, s[{sDI}:{sDI+3}], 0 offen",
      'M': f"buffer_load_dwordx2 {vr(vM,2)}, v{vM}, s[{sM}:{sM+3}], 0 offen",
    }
    for nm in LORD.split(','):
        if nm in ('DI', 'M'): I(f"s_mov_b64 exec, s[{sEM}:{sEM+1}]")
        I(first[nm]); VM.add(nm)
        if nm in ('DI', 'M'): I("s_mov_b64 exec, -1")
    stamp(SV, 1)
    def decode(s, head):
        t = vT + 8 + 2 * (s % 2)
        x = xreg(s)
        I("s_mov_b64 exec, -1")
        VM.wait(('HX0' if s < 4 else 'HX1') if head else f'TX{s-NH}')
        I(f"v_and_b32 v{t}, 0x3ff, v{x}")
        I(f"v_lshrrev_b32 v{x}, 10, v{x}")
        if head:
            I(f"v_cmp_ne_u32_e64 {msk(s)}, s{s3ff}, v{t}")
        I(f"v_lshlrev_b32 v{vL8+s}, 3, v{t}")
    def gather(s):
        x = xreg(s)
        I(f"s_mov_b64 exec, {msk(s)}")
        I(f"buffer_load_dwordx2 {vr(vMD+2*s,2)}, v{x}, s[{sM}:{sM+3}], 0 offen {GLF}")
        VM.add(f'G{s}')
    def rank(s):
        t = vT + 8 + 2 * (s % 2)
        I(f"v_lshrrev_b32 v{t+1}, 1, v{vL8+s}")
        I(f"ds_add_rtn_u32 v{vRK+s}, v{t+1}, v{vOne} offset:{P2_CNT}")
        LG.add(f'R{s}')
    def dgr(s, head, dorank=True):
        decode(s, head)
        gather(s)
        if dorank:
            rank(s)
    def tails_addr(lbl):
        lo, hi, ad = vT, vT + 1, vT + 2
        I(f"s_add_u32 s{sT0}, s{sW0}, {WIN}")
        I(f"v_sub_u32 v{lo}, s{sW0}, v{vPre}")
        I(f"v_sub_u32 v{hi}, s{sT0}, v{vPre}")
        I(f"v_max_i32 v{lo}, 0, v{lo}")
        I(f"v_min_i32 v{hi}, v{hi}, v{vCnt}")
        I(f"v_add_u32 v{lo}, v{lo}, v{vK}")
        I(f"v_add_u32 v{ad}, v{lo}, v{vPre}")
        I(f"v_subrev_u32 v{ad}, s{sW0}, v{ad}")
        I(f"v_lshl_add_u32 v{ad}, s{sWave}, 8, v{ad}")
        I(f"s_sub_u32 s{sNwin}, s{sNW}, s{sW0}")
        I(f"s_min_i32 s{sNwin}, s{sNwin}, {WIN}")
        L(f"{name}_lloop{lbl}")
        I(f"v_cmpx_lt_i32 vcc, v{lo}, v{hi}")
        I(f"s_cbranch_execz {name}_ldone{lbl}")
        I(f"ds_write_b8 v{ad}, v{vR16} offset:{P2_LST}")
        I(f"v_add_u32 v{lo}, 4, v{lo}")
        I(f"v_add_u32 v{ad}, 4, v{ad}")
        I(f"s_branch {name}_lloop{lbl}")
        L(f"{name}_ldone{lbl}")
        I("s_mov_b64 exec, -1")
        for j in range(NT):
            I(f"ds_read_u8 v{vTXr+j}, v{vLrd} offset:{P2_LST+64*j}")
        for j in range(NT):
            I(f"s_sub_i32 s{sT0}, s{sNwin}, {64*j}")
            I(f"v_cmp_gt_i32_e64 {msk(NH+j)}, s{sT0}, v{vLane}")
        I(f"v_add_u32 v{vT+3}, s{sW0}, v{vLane}")
        I("s_waitcnt lgkmcnt(0)")
        for j in range(NT):
            I(f"ds_bpermute_b32 v{vTXr+j}, v{vTXr+j}, v{vD}")
        I("s_waitcnt lgkmcnt(0)")
        LG.q = []
        for j in range(NT):
            I(f"v_add_u32 v{vTXr+j}, v{vTXr+j}, v{vT+3}")
        for j in range(NT):
            I(f"v_lshlrev_b32 v{vTYr+j}, 1, v{vTXr+j}")
            I(f"v_lshlrev_b32 v{vTXr+j}, 2, v{vTXr+j}")
        for j in range(NT):
            I(f"s_mov_b64 exec, {msk(NH+j)}")
            I(f"buffer_load_dword v{vTXr+j}, v{vTXr+j}, s[{sWS}:{sWS+3}], s{sTX} offen offset:{256*j} {RLF}")
            VM.add(f'TX{j}')
            I(f"buffer_load_ushort v{vTYr+j}, v{vTYr+j}, s[{sWS}:{sWS+3}], s{sTY} offen offset:{128*j} {RLF}")
            VM.add(f'TY{j}')
        I("s_mov_b64 exec, -1")
    def yreg(s):
        if s < NH:
            return vHY + 2*(s // 4) + (s % 4) // 2, (s % 2), ('HY0' if s < 4 else 'HY1')
        return vTYr + (s - NH), 0, f'TY{s-NH}'
    def gread(s):
        gs = vGS + 8*(s % 2)
        I(f"s_mov_b64 exec, {msk(s)}")
        I(f"v_lshlrev_b32 v{gs+6}, 1, v{vL8+s}")
        I(f"ds_read_b128 {vr(gs,4)}, v{gs+6} offset:{P2_GA}")
        I(f"ds_read_b64 {vr(gs+4,2)}, v{vL8+s} offset:{P2_GB}")
        LG.add(f'GRa{s}'); LG.add(f'GRb{s}')
    def sbody(s, uid=""):
        gs = vGS + 8*(s % 2)
        rk = vRK + s
        md = vMD + 2*s
        l8 = vL8 + s
        y, hi_, ytag = yreg(s)
        c1, c2, c3, c12, c3l, c3h = vT+4, vT+5, vT+6, vT+7, vT+4, vT+5
        q = vT + 6
        VM.wait(ytag)
        if hi_:
            I(f"v_and_b32 v{c1}, 0xffff0000, v{y}")
        else:
            I(f"v_lshlrev_b32 v{c1}, 16, v{y}")
        I(f"v_mul_f32 v{c1}, 0.15915494, v{c1}")
        I(f"v_fract_f32 v{c1}, v{c1}")
        I(f"v_cos_f32 v{c1}, v{c1}")
        I("s_nop 0")
        I(f"v_mul_f32 v{q}, v{c1}, v{c1}")
        I(f"v_fma_f32 v{c2}, v{q}, 2.0, -1.0")
        I(f"v_fma_f32 v{c3}, v{c2}, 2.0, -1.0")
        I(f"v_cvt_pk_bf16_f32 v{c12}, v{c1}, v{c2}")
        I(f"v_mul_f32 v{c3}, v{c3}, v{c1}")
        I(f"v_cvt_pk_bf16_f32 v{c3l}, v{c3}, 0")
        I(f"v_cvt_pk_bf16_f32 v{c3h}, 0, v{c3}")
        LG.wait(f'R{s}')
        LG.wait(f'GRb{s}')
        for d in range(4):
            I(f"v_dot2_f32_bf16 v{gs+d}, v{gs+d}, v{c12}, 0")
        I(f"v_dot2_f32_bf16 v{gs+0}, v{gs+4}, v{c3l}, v{gs+0}")
        I(f"v_dot2_f32_bf16 v{gs+1}, v{gs+4}, v{c3h}, v{gs+1}")
        I(f"v_dot2_f32_bf16 v{gs+2}, v{gs+5}, v{c3l}, v{gs+2}")
        I(f"v_dot2_f32_bf16 v{gs+3}, v{gs+5}, v{c3h}, v{gs+3}")
        VM.wait(f'G{s}')
        for d in range(4):
            I(f"v_dot2_f32_bf16 v{vT+d}, v{md}, s{sWDP+2*d}, 0")
        for d in range(4):
            I(f"v_dot2c_f32_bf16 v{vT+d}, s{sWDP+2*d+1}, v{md+1}")
        I(f"v_min_u32 v{gs+7}, {CAPE}, v{rk}")
        I(f"v_mad_u32_u24 v{gs+7}, v{gs+7}, s{sRS}, v{l8}")
        I(f"v_cmp_le_u32 vcc, {CAPE}, v{rk}")
        I(f"v_pk_mul_f32 {vr(vT,2)}, {vr(vT,2)}, {vr(gs,2)}")
        I(f"v_pk_mul_f32 {vr(vT+2,2)}, {vr(vT+2,2)}, {vr(gs+2,2)}")
        I(f"v_cvt_pk_bf16_f32 v{md}, v{vT}, v{vT+1}")
        I(f"v_cvt_pk_bf16_f32 v{md+1}, v{vT+2}, v{vT+3}")
        I(f"ds_write_b64 v{gs+7}, {vr(md,2)} offset:{P2_PAY}")
        LG.add(f'W{s}')
        I(f"s_cbranch_vccz {name}_noovf{s}{uid}")
        I("s_mov_b64 exec, vcc")
        I(f"v_lshlrev_b32 v{gs+6}, 1, v{l8}")
        for d in range(4):
            I(f"ds_add_f32 v{gs+6}, v{vT+d} offset:{P2_OVF+4*d}")
        I("s_waitcnt lgkmcnt(0)")
        L(f"{name}_noovf{s}{uid}")
    def reduce_(uid):
        I("s_mov_b64 exec, -1")
        I(f"v_mov_b32 v{vT+4}, {P2_FLAG}")
        LG.wait_all()
        stamp(SV, 7) if not uid else None
        I("s_barrier")
        stamp(SV, 8) if not uid else None
        I(f"ds_read_b32 v{vT+5}, v{vT+4}")
        I(f"s_cmp_ge_u32 s{sWave}, 10")
        I(f"s_cbranch_scc1 {name}_nored{uid}")
        X0, X1 = vGS, vGS + 8
        vBase = vT + 6
        I(f"ds_read_b32 v{vNe}, v{vTid4} offset:{P2_CNT}")
        for r in range(4):
            I(f"ds_read_b64 {vr(X0+2*r,2)}, v{vE8} offset:{P2_PAY+RS*r}")
        I(f"v_add_u32 v{vBase}, {P2_PAY+4*RS}, v{vE8}")
        I("s_mov_b32 s80, 0x00003f80")
        I("s_mov_b32 s81, 0x3f800000")
        I(f"s_mov_b32 s{sT0}, 0")
        I("s_waitcnt lgkmcnt(4)")
        I(f"v_min_u32 v{vNe}, {CAPE}, v{vNe}")
        def accum(X):
            for r in range(4):
                I(f"v_cmpx_lt_u32 vcc, s{sT0}, v{vNe}")
                I(f"s_add_u32 s{sT0}, s{sT0}, 1")
                if r == 0:
                    I(f"s_cbranch_execz {name}_reddone{uid}")
                I(f"v_dot2c_f32_bf16 v{vAcc+0}, s80, v{X+2*r}")
                I(f"v_dot2c_f32_bf16 v{vAcc+1}, s81, v{X+2*r}")
                I(f"v_dot2c_f32_bf16 v{vAcc+2}, s80, v{X+2*r+1}")
                I(f"v_dot2c_f32_bf16 v{vAcc+3}, s81, v{X+2*r+1}")
        L(f"{name}_redloop{uid}")
        for r in range(4):
            I(f"ds_read_b64 {vr(X1+2*r,2)}, v{vBase} offset:{RS*r}")
        I("s_waitcnt lgkmcnt(4)")
        accum(X0)
        for r in range(4):
            I(f"ds_read_b64 {vr(X0+2*r,2)}, v{vBase} offset:{RS*(4+r)}")
        I(f"v_add_u32 v{vBase}, {8*RS}, v{vBase}")
        I("s_waitcnt lgkmcnt(4)")
        accum(X1)
        I(f"s_branch {name}_redloop{uid}")
        L(f"{name}_reddone{uid}")
        I("s_mov_b64 exec, -1")
        L(f"{name}_nored{uid}")
        I("s_waitcnt lgkmcnt(0)")
        stamp(SV, 9) if not uid else None
        I(f"v_readfirstlane_b32 s{sMore}, v{vT+5}")
        I(f"s_add_u32 s{sW0}, s{sW0}, {WIN}")
    def moreflag(uid):
        I(f"s_add_u32 s{sT0}, s{sW0}, {WIN}")
        I(f"s_cmp_gt_u32 s{sNW}, s{sT0}")
        I(f"s_cbranch_scc0 {name}_nomore{uid}")
        I(f"v_mov_b32 v{vT+4}, {P2_FLAG}")
        I(f"v_mov_b32 v{vT+5}, s{sT0}")
        I(f"ds_write_b32 v{vT+4}, v{vT+5}")
        L(f"{name}_nomore{uid}")

    def tables():
        I(f"s_cmp_ge_u32 s{sWave}, 10")
        I(f"s_cbranch_scc1 {name}_notab")
        save = list(VM.q)
        I("s_mov_b64 exec, -1")
        VM.wait('DI')
        I("s_waitcnt lgkmcnt(0)")
        edge_tables(vDist, sC, sWB, sWR, vGAl, vGBl, 52, 60, 100, 101, 102, 56, [33, 26, 27])
        I(f"s_mov_b64 exec, s[{sEM}:{sEM+1}]")
        I(f"ds_write_b128 v{vT+4}, {vr(vGAl,4)} offset:{P2_GA}")
        I(f"ds_write_b64 v{vE8}, {vr(vGBl,2)} offset:{P2_GB}")
        I("s_mov_b64 exec, -1")
        I(f"v_mov_b32 v{vGate}, v{vGBl+2}")
        I(f"v_mov_b32 v{vGate+1}, v{vGBl+3}")
        VM.q = save
        L(f"{name}_notab")
    def const_setup():
        I(f"s_load_dwordx8 s[{sRAW}:{sRAW+7}], s[{sPD}:{sPD+1}], 0")
        I(f"s_load_dwordx8 s[{sRAW+8}:{sRAW+15}], s[{sPD+2}:{sPD+3}], 0")
        I(f"s_mov_b32 s{sTX}, {TXG:#x}")
        I(f"s_mov_b32 s{sTY}, {TYG:#x}")
        I(f"s_movk_i32 s{s3ff}, 0x3ff")
        I(f"s_movk_i32 s{sRS}, {RS}")
        I(f"s_mov_b32 s{sW0}, 0")
    for s in range(TORD):
        t = vT + 8 + 2 * (s % 2)
        x = xreg(s)
        I("s_mov_b64 exec, -1")
        VM.wait('HX0' if s < 4 else 'HX1')
        I(f"v_and_b32 v{t}, 0x3ff, v{x}")
        I(f"v_lshrrev_b32 v{x}, 10, v{x}")
        I(f"v_cmp_ne_u32 vcc, 0x3ff, v{t}")
        I(f"v_lshlrev_b32 v{vL8+s}, 3, v{t}")
        I("s_mov_b64 exec, vcc")
        I(f"buffer_load_dwordx2 {vr(vMD+2*s,2)}, v{x}, s[{sM}:{sM+3}], 0 offen {GLF}")
        VM.add(f'G{s}')
    tables()
    const_setup()
    stamp(SV, 2)
    I("s_mov_b64 exec, -1")
    if TORD:
        I(f"s_movk_i32 s{sT0}, 0x1ff8")
        for s in range(TORD):
            I(f"v_cmp_ne_u32_e64 {msk(s)}, s{sT0}, v{vL8+s}")
    for s in range(TORD, PRE):
        dgr(s, True, dorank=False)
    I("s_mov_b64 exec, -1")
    I("s_waitcnt lgkmcnt(0)")
    for (dst, raw) in ((sWDP, sRAW), (sWUP, sRAW + 8)):
        for dd in range(2):
            I(f"s_pack_ll_b32_b16 s{dst+4*dd+0}, s{raw+dd}, s{raw+2+dd}")
            I(f"s_pack_ll_b32_b16 s{dst+4*dd+1}, s{raw+4+dd}, s{raw+6+dd}")
            I(f"s_pack_hh_b32_b16 s{dst+4*dd+2}, s{raw+dd}, s{raw+2+dd}")
            I(f"s_pack_hh_b32_b16 s{dst+4*dd+3}, s{raw+4+dd}, s{raw+6+dd}")
    stamp(SV, 3)
    I("s_barrier")
    stamp(SV, 4)
    for s in range(PRE):
        I(f"s_mov_b64 exec, {msk(s)}")
        rank(s)
    for s in range(PRE, DIST):
        dgr(s, True)
    I("s_mov_b64 exec, -1")
    VM.wait('CNT')
    I(f"v_and_b32 v{vT}, 0xffff, v{vCnt}")
    I(f"v_lshrrev_b32 v{vCnt}, 16, v{vCnt}")
    I(f"v_cmp_eq_u32 vcc, 0, v{vK}")
    I(f"v_add_u32 v{vD}, v{vT}, v{vD}")
    I("s_nop 0")
    I(f"v_cndmask_b32 v{vPre}, 0, v{vCnt}, vcc")
    wave_scan(vPre)
    I("s_nop 0")
    I(f"v_readlane_b32 s{sNW}, v{vPre}, 63")
    I(f"v_sub_u32 v{vPre}, v{vPre}, v{vCnt}")
    I(f"v_sub_u32 v{vD}, v{vD}, v{vPre}")
    tails_addr("a")
    moreflag("a")
    stamp(SV, 5)
    NP = NS - 2
    gread(0)
    for s in range(NP):
        if s + DIST < NS:
            dgr(s + DIST, s + DIST < NH)
        if s + 1 < NP:
            gread(s + 1)
        I(f"s_mov_b64 exec, {msk(s)}")
        sbody(s)
        if s == 3:
            stamp(SV, 6)
    for s in range(NP, NS):
        I(f"s_cmp_eq_u64 {msk(s)}, 0")
        I(f"s_cbranch_scc1 {name}_sdone")
        gread(s)
        sbody(s)
    L(f"{name}_sdone")
    reduce_("")
    I(f"s_cmp_lg_u32 s{sMore}, s{sW0}")
    I(f"s_cbranch_scc1 {name}_final")
    L(f"{name}_round")
    I("s_waitcnt vmcnt(0)")
    VM.q = []; LG.q = []
    I("s_barrier")
    I(f"v_mov_b32 v{vT}, 0")
    I(f"v_cmp_gt_u32 vcc, 640, v0")
    I("s_mov_b64 exec, vcc")
    I(f"ds_write_b32 v{vTid4}, v{vT} offset:{P2_CNT}")
    I("s_mov_b64 exec, -1")
    tails_addr("b")
    I("s_waitcnt lgkmcnt(0)")
    I("s_barrier")
    moreflag("b")
    for s in range(NH, NS):
        dgr(s, False)
    for s in range(NH, NS):
        gread(s)
        sbody(s, "b")
    reduce_("b")
    I(f"s_cmp_lg_u32 s{sMore}, s{sW0}")
    I(f"s_cbranch_scc0 {name}_round")
    L(f"{name}_final")
    I(f"s_cmp_ge_u32 s{sWave}, 10")
    I(f"s_cbranch_scc1 {name}_fin2")
    f = vGS
    I(f"v_lshlrev_b32 v{vT}, 4, v0")
    I(f"ds_read_b128 {vr(f,4)}, v{vT} offset:{P2_OVF}")
    I("s_waitcnt vmcnt(0) lgkmcnt(0)")
    for d in range(4):
        I(f"v_add_f32 v{vAcc+d}, v{vAcc+d}, v{f+d}")
    I(f"v_cvt_pk_bf16_f32 v{f}, v{vAcc}, v{vAcc+1}")
    I(f"v_cvt_pk_bf16_f32 v{f+1}, v{vAcc+2}, v{vAcc+3}")
    for d in range(4):
        I(f"v_dot2_f32_bf16 v{f+2+d}, v{f}, s{sWUP+2*d}, 0")
    for d in range(4):
        I(f"v_dot2c_f32_bf16 v{f+2+d}, s{sWUP+2*d+1}, v{f+1}")
    I("s_nop 2")
    I(f"v_cvt_pk_bf16_f32 v{f}, v{f+2}, v{f+3}")
    I(f"v_cvt_pk_bf16_f32 v{f+1}, v{f+4}, v{f+5}")
    I(f"v_lshlrev_b32 v{f+2}, 16, v{f}")
    I(f"v_and_b32 v{f+3}, 0xffff0000, v{f}")
    I(f"v_lshlrev_b32 v{f+4}, 16, v{f+1}")
    I(f"v_and_b32 v{f+5}, 0xffff0000, v{f+1}")
    I(f"v_lshlrev_b32 v{f+6}, 16, v{vGate}")
    I(f"v_and_b32 v{f+7}, 0xffff0000, v{vGate}")
    I(f"v_lshlrev_b32 v{f+8}, 16, v{vGate+1}")
    I(f"v_and_b32 v{f+9}, 0xffff0000, v{vGate+1}")
    for d in range(4):
        I(f"v_mul_f32 v{f+2+d}, v{f+2+d}, v{f+6+d}")
    I(f"v_cvt_pk_bf16_f32 v{f}, v{f+2}, v{f+3}")
    I(f"v_cvt_pk_bf16_f32 v{f+1}, v{f+4}, v{f+5}")
    I(f"v_lshlrev_b32 v{f+2}, 16, v{f}")
    I(f"v_and_b32 v{f+3}, 0xffff0000, v{f}")
    I(f"v_lshlrev_b32 v{f+4}, 16, v{f+1}")
    I(f"v_and_b32 v{f+5}, 0xffff0000, v{f+1}")
    I(f"v_lshlrev_b32 v{f+6}, 16, v{vM}")
    I(f"v_and_b32 v{f+7}, 0xffff0000, v{vM}")
    I(f"v_lshlrev_b32 v{f+8}, 16, v{vM+1}")
    I(f"v_and_b32 v{f+9}, 0xffff0000, v{vM+1}")
    for d in range(4):
        I(f"v_add_f32 v{f+2+d}, v{f+2+d}, v{f+6+d}")
    I(f"v_cvt_pk_bf16_f32 v{f}, v{f+2}, v{f+3}")
    I(f"v_cvt_pk_bf16_f32 v{f+1}, v{f+4}, v{f+5}")
    I(f"buffer_store_dwordx2 {vr(f,2)}, v{vE8}, s[{sOUT}:{sOUT+3}], 0 offen")
    L(f"{name}_fin2")
    stamp(SV, 10)
    if TS:
        I("s_waitcnt vmcnt(0)")
    stamp(SV, 11)
    stamp_out(SV, 1, 100, 4)
    L(f"{name}_end")
    I("s_endpgm")

def desc(name, vgpr, sgpr=102):
    acc = (vgpr + 3) // 4 * 4
    e(f".amdhsa_kernel {name}")
    e(f"  .amdhsa_next_free_vgpr {vgpr}")
    e(f"  .amdhsa_next_free_sgpr {sgpr}")
    e(f"  .amdhsa_accum_offset {acc}")
    e("  .amdhsa_group_segment_fixed_size 0")
    e("  .amdhsa_kernarg_size 112")
    e("  .amdhsa_user_sgpr_count 2")
    e("  .amdhsa_user_sgpr_kernarg_segment_ptr 1")
    e("  .amdhsa_system_sgpr_workgroup_id_x 1")
    e(".end_amdhsa_kernel")

K1 = "gs_bin_kernel"
K2 = "gather_scatter__molecular_angular_gemnet__graph_kernel"

def main(path):
    e("; GemNet triplet gather/scatter: pass 1 bins triplets by output edge block, pass 2 reduces per block")
    e(f"; @launch kernel={K1} grid=({NB},1,1) block=(1024,1,1) lds={P1_LDS}")
    e(f"; @launch kernel={K2} grid=({NB},1,1) block=(1024,1,1) lds={P2_LDS}")
    e('.amdgcn_target "amdgcn-amd-amdhsa--gfx950"')
    e(".text")
    e(f".globl {K1}")
    e(f".globl {K2}")
    p1(K1)
    p2(K2)
    e('.section .rodata,"a"')
    e(".p2align 6")
    desc(K1, 104)
    e(".p2align 6")
    desc(K2, 124)
    open(path, "w").write("\n".join(x for x in out if x is not None) + "\n")
    print("P1_LDS", P1_LDS, "P2_LDS", P2_LDS, file=sys.stderr)

if __name__ == "__main__":
    main(sys.argv[1] if len(sys.argv) > 1 else "gather_scatter__molecular_angular_gemnet__graph.s")
```

```python
import sys, os

E = 160000
T = 2560000
NB = 256
EPB = 625
CH = 10000
HC = 40
CELL = 0x0
TG = 0x1000000
TGS = CH * 8
WS_USED = TG + NB * TGS
W3 = 0x00020000
NH = 10
NT = 2
NS = NH + NT
WIN = NT * 64
CAPE = 25
RS = 5120

def env(k, d): return os.environ.get(k, d)
LDF = env('LDF', '')
STF = env('STF', 'sc1')
RLF = env('RLF', '')
GLF = env('GLF', '')
GLU = env('GLU', '')
P1S = env('P1S', 'O0,O1,O2|I0,A0|I1,A1,I2,A2')
TS = int(env('TS', '0'))
XCDMAP = int(env('XCDMAP', '1'))
DIST = int(env('DIST', '4'))
PRE = int(env('PRE', '4'))
LORD = env('LORD', 'H00,H01,DI,H10,H11,M')
LPRIO = int(env('LPRIO', '3'))
TORD = int(env('TORD', '4'))
TPOS = int(env('TPOS', '0'))
SORD = [int(x) for x in env('SORD', '0,1,2,3,5,6,7,8,4,9,10,11').split(',')]
NU = int(env('NU', '1'))
TABPOS = env('TABPOS', 'pre')
G0N = int(env('G0N', '2'))
RSH = int(env('RSH', '8'))
SCW = int(env('SCW', '15'))
GPS = [int(x) for x in env('GPS', '1').split(',')]
TPG = int(env('TPG', '6'))
B0E = int(env('B0E', '1'))
B0W = int(env('B0W', '8'))
NOG = int(env('NOG', '0'))
NOS = int(env('NOS', '0'))
PRIO = env('PRIO', '')
PR = dict((a.split(':')[0], int(a.split(':')[1])) for a in PRIO.split(',') if a)
BARS = [int(x) for x in env('BARS', '').split(',') if x]
TSC = int(env('TSC', '0'))
EARLY = int(env('EARLY', '0'))
GPE = [int(x) for x in env('GPE', '0,0,0,0').split(',')]
TMF = int(env('TMF', '1'))
PKR = int(env('PKR', '0'))
UPRE = int(env('UPRE', '0'))
TSP = int(env('TSP', '-1'))
MDM = int(env('MDM', '1'))
G3F = int(env('G3F', '1'))
PKM = int(env('PKM', '0'))
TBAR = int(env('TBAR', '0'))
MPOS = int(env('MPOS', '-1'))
XE = int(env('XE', '0'))
TWO = int(env('TWO', '0'))
L1OFF = 64 if TWO else 128
HSTEP = 4 if TWO else 8
TS_OFF = 0x2800000
out = []
def e(s=""):
    out.append(s)
def I(s):
    out.append("    " + s)
def L(s):
    out.append(s + ":")
def vr(a, n=1):
    return f"v{a}" if n == 1 else f"v[{a}:{a+n-1}]"
def sr(a, n=1):
    return f"s{a}" if n == 1 else f"s[{a}:{a+n-1}]"

class Trk:
    def __init__(self, name, mx):
        self.name, self.mx, self.q = name, mx, []
    def add(self, tag):
        self.q.append(tag)
    def wait(self, tag):
        if tag not in self.q:
            return
        i = len(self.q) - 1 - self.q[::-1].index(tag)
        n = len(self.q) - 1 - i
        self.q = self.q[i+1:]
        I(f"s_waitcnt {self.name}({min(n, self.mx)})")
    def wait_all(self):
        self.q = []
        I(f"s_waitcnt {self.name}(0)")

def stamp(v, k):
    if not TS: return
    I("s_memrealtime vcc")
    I("s_waitcnt lgkmcnt(0)")
    I(f"v_writelane_b32 v{v}, vcc_lo, {k}")

def stamp_out(v, which, t0, srd_base):
    if not TS: return
    I("s_mov_b64 exec, -1")
    I(f"s_load_dwordx2 s[{srd_base}:{srd_base+1}], s[0:1], 104")
    I(f"v_lshrrev_b32 v{t0}, 6, v0")
    I(f"v_lshlrev_b32 v{t0}, 6, v{t0}")
    I(f"v_and_b32 v{t0+1}, 63, v0")
    I(f"v_lshl_add_u32 v{t0}, v{t0+1}, 2, v{t0}")
    I(f"s_lshl_b32 s3, s2, 10")
    I(f"s_add_u32 s3, s3, {TS_OFF + which*0x40000:#x}")
    I("s_waitcnt lgkmcnt(0)")
    I(f"s_mov_b32 s{srd_base+2}, {TS_OFF + 0x80000:#x}")
    I(f"s_mov_b32 s{srd_base+3}, {W3:#x}")
    I("s_mov_b64 exec, 0xffff")
    I(f"buffer_store_dword v{v}, v{t0}, s[{srd_base}:{srd_base+3}], s3 offen")

def wave_scan(reg):
    for sh in (1, 2, 4, 8):
        I("s_nop 1")
        I(f"v_add_u32_dpp v{reg}, v{reg}, v{reg} row_shr:{sh} row_mask:0xf bank_mask:0xf bound_ctrl:0")
    I("s_nop 1")
    I(f"v_add_u32_dpp v{reg}, v{reg}, v{reg} row_bcast:15 row_mask:0xa bank_mask:0xf")
    I("s_nop 1")
    I(f"v_add_u32_dpp v{reg}, v{reg}, v{reg} row_bcast:31 row_mask:0xc bank_mask:0xf")

def perm_id(dst, tmp):
    if XCDMAP:
        I(f"s_and_b32 s{dst}, s2, 7")
        I(f"s_lshl_b32 s{dst}, s{dst}, 5")
        I(f"s_lshr_b32 s{tmp}, s2, 3")
        I(f"s_add_u32 s{dst}, s{dst}, s{tmp}")
    else:
        I(f"s_mov_b32 s{dst}, s2")

def srd_off(base, total, off_reg):
    I(f"s_add_u32 s{base}, s{base}, s{off_reg}")
    I(f"s_addc_u32 s{base+1}, s{base+1}, 0")
    I(f"s_sub_u32 s{base+2}, {total}, s{off_reg}")
    I(f"s_mov_b32 s{base+3}, {W3:#x}")

def srd_whole(base, total):
    I(f"s_mov_b32 s{base+2}, {total}")
    I(f"s_mov_b32 s{base+3}, {W3:#x}")

P1_CNT = 0
P1_OFT = 1024
P1_MT = 2048
P1_IMG = 4096
CROW = int(env('CROW', '264'))
P1_TAIL = (P1_IMG + NB * CROW + 15) // 16 * 16
P1_LDS = P1_TAIL + TGS

SV1 = 104
def p1(name):
    e(".p2align 8")
    e(f".type {name},@function")
    L(name)
    I(f"s_cmp_ge_u32 s2, {NB}")
    I(f"s_cbranch_scc1 {name}_end")
    stamp(SV1, 0)
    VM = Trk("vmcnt", 63)
    sOUT, sIN, sANG, sWS = 4, 8, 12, 16
    I(f"s_load_dwordx2 s[{sOUT}:{sOUT+1}], s[0:1], 16")
    I(f"s_load_dwordx2 s[{sIN}:{sIN+1}], s[0:1], 8")
    I(f"s_load_dwordx2 s[{sANG}:{sANG+1}], s[0:1], 32")
    I(f"s_load_dwordx2 s[{sWS}:{sWS+1}], s[0:1], 104")
    vO, vI_, vA, vB, vR, vQ, vY = 8, 18, 28, 36, 46, 56, 66
    vT = 76
    I("v_lshlrev_b32 v1, 4, v0")
    I("v_lshlrev_b32 v2, 3, v0")
    I("v_lshlrev_b32 v3, 2, v0")
    I("v_mov_b32 v4, 1")
    I("v_mov_b32 v5, 0")
    I("v_and_b32 v6, 0x3fc, v3")
    I(f"ds_write_b32 v6, v5 offset:{P1_CNT}")
    perm_id(3, 22)
    vX1, vX2, vA1a, vA2a = 84, 85, 86, 87
    I(f"v_add_u32 v{vX1}, 16384, v1")
    I(f"v_add_u32 v{vX2}, 32768, v2")
    I(f"v_add_u32 v{vA1a}, 8192, v2")
    I(f"v_add_u32 v{vA2a}, 16384, v3")
    I(f"v_lshrrev_b32 v{vT+2}, 6, v0")
    I("s_mul_i32 s22, s3, 40000")
    I("s_mul_i32 s23, s3, 20000")
    I("s_movk_i32 s21, 0xfd8f")
    I(f"v_readfirstlane_b32 s20, v{vT+2}")
    I("s_waitcnt lgkmcnt(0)")
    srd_off(sOUT, T * 4, 22)
    srd_off(sIN, T * 4, 22)
    srd_off(sANG, T * 2, 23)
    srd_whole(sWS, WS_USED)
    def ld(nm):
        tx = {
         'O0': f"buffer_load_dwordx4 {vr(vO,4)}, v1, s[{sOUT}:{sOUT+3}], 0 offen {LDF}",
         'O1': f"buffer_load_dwordx4 {vr(vO+4,4)}, v{vX1}, s[{sOUT}:{sOUT+3}], 0 offen {LDF}",
         'O2': f"buffer_load_dwordx2 {vr(vO+8,2)}, v{vX2}, s[{sOUT}:{sOUT+3}], 0 offen {LDF}",
         'I0': f"buffer_load_dwordx4 {vr(vI_,4)}, v1, s[{sIN}:{sIN+3}], 0 offen {LDF}",
         'A0': f"buffer_load_dwordx2 {vr(vA,2)}, v2, s[{sANG}:{sANG+3}], 0 offen {LDF}",
         'I1': f"buffer_load_dwordx4 {vr(vI_+4,4)}, v{vX1}, s[{sIN}:{sIN+3}], 0 offen {LDF}",
         'A1': f"buffer_load_dwordx2 {vr(vA+2,2)}, v{vA1a}, s[{sANG}:{sANG+3}], 0 offen {LDF}",
         'I2': f"buffer_load_dwordx2 {vr(vI_+8,2)}, v{vX2}, s[{sIN}:{sIN+3}], 0 offen {LDF}",
         'A2': f"buffer_load_dword v{vA+4}, v{vA2a}, s[{sANG}:{sANG+3}], 0 offen {LDF}"}[nm]
        I(tx); VM.add(nm)
    sched = [[x for x in g.split(',') if x] for g in P1S.split('|')]
    for nm in sched[0]: ld(nm)
    vCA, vCG, vCM, vCS, vCA2 = 88, 89, 90, 91, 98
    I(f"v_lshrrev_b32 v{vT}, 3, v0")
    I(f"v_and_b32 v{vT+1}, 7, v0")
    I(f"v_mul_u32_u24 v{vCA}, {CROW}, v{vT}")
    I(f"v_lshl_add_u32 v{vCA}, v{vT+1}, 5, v{vCA}")
    I(f"v_add_u32 v{vCA}, {P1_IMG}, v{vCA}")
    I(f"v_add_u32 v{vCA2}, {128 * CROW}, v{vCA}")
    I(f"v_lshlrev_b32 v{vCG}, 8, v{vT}")
    I(f"v_lshl_add_u32 v{vCG}, v{vT+1}, 4, v{vCG}")
    I(f"v_lshlrev_b32 v{vCM}, 2, v{vT}")
    I(f"v_add_u32 v{vCM}, {P1_MT}, v{vCM}")
    I(f"v_and_b32 v{vCS}, 1, v0")
    I(f"v_lshlrev_b32 v{vCS}, 4, v{vCS}")
    I(f"v_xor_b32 v{vCS}, 16, v{vCS}")
    I("s_mov_b32 s31, 0xffff")
    I("s_barrier")
    for nm in sched[1]: ld(nm)
    stamp(SV1, 1)
    for j in range(10):
        if j == 0: VM.wait('O0')
        if j == 4: VM.wait('O1')
        if j == 8:
            I("v_cmp_gt_u32 vcc, 0x388, v0")
            VM.wait('O2')
            I("s_mov_b64 s[100:101], vcc")
            I("s_mov_b64 exec, vcc")
        t = vT + (j % 4)
        I(f"v_mul_hi_u32_u24 v{t}, 0x68db8c, v{vO+j}")
        I(f"v_lshlrev_b32 v{vB+j}, 2, v{t}")
        I(f"v_mad_i32_i24 v{vO+j}, v{t}, s21, v{vO+j}")
        I(f"ds_add_rtn_u32 v{vR+j}, v{vB+j}, v4 offset:{P1_CNT}")
        I(f"v_mul_u32_u24 v{vQ+j}, {CROW}, v{t}")
    I("s_mov_b64 exec, -1")
    I("s_waitcnt lgkmcnt(0)")
    stamp(SV1, 3)
    I("s_barrier")
    for nm in sched[2]: ld(nm)
    stamp(SV1, 4)
    c, o = 80, 92
    I("v_and_b32 v6, 63, v0")
    I("v_lshlrev_b32 v6, 4, v6")
    I(f"ds_read_b128 {vr(c,4)}, v6 offset:{P1_CNT}")
    mk = [32, 34, 36, 38, 40, 42, 44, 46, 48, 50]
    for j in range(10):
        t = vT + (j % 4)
        I(f"v_cmp_gt_u32_e64 s[{mk[j]}:{mk[j]+1}], {HC}, v{vR+j}")
        I(f"v_and_b32 v{t}, 7, v{vR+j}")
        I(f"v_lshl_add_u32 v{vQ+j}, v{t}, 5, v{vQ+j}")
        I(f"v_lshrrev_b32 v{t}, 3, v{vR+j}")
        I(f"v_lshl_add_u32 v{vY+j}, v{t}, 1, v{vQ+j}")
        I(f"v_lshl_add_u32 v{vQ+j}, v{t}, 2, v{vQ+j}")
    I("s_waitcnt lgkmcnt(0)")
    x = 100
    for k in range(4):
        I(f"v_subrev_u32 v{x+k}, {HC}, v{c+k}")
    for k in range(4):
        I(f"v_max_i32 v{x+k}, 0, v{x+k}")
    I(f"v_add_u32 v{o+2}, v{x}, v{x+1}")
    I(f"v_add_u32 v{o+3}, v{o+2}, v{x+2}")
    I(f"v_add_u32 v96, v{o+3}, v{x+3}")
    I("v_mov_b32 v97, v96")
    wave_scan(97)
    I(f"v_sub_u32 v{o}, v97, v96")
    I(f"v_readlane_b32 s23, v97, 63")
    I(f"v_add_u32 v{o+1}, v{o}, v{x}")
    I(f"v_add_u32 v{o+2}, v{o}, v{o+2}")
    I(f"v_add_u32 v{o+3}, v{o}, v{o+3}")
    for k in range(4):
        I(f"v_lshl_or_b32 v{c+k}, v{c+k}, 16, v{o+k}")
    I(f"s_mov_b32 s22, {P1_TAIL - P1_IMG - 8 * HC}")
    for k in range(4):
        I(f"v_lshl_add_u32 v{o+k}, v{o+k}, 3, s22")
    I(f"ds_write_b128 v6, {vr(o,4)} offset:{P1_OFT}")
    I(f"ds_write_b128 v6, {vr(c,4)} offset:{P1_MT}")
    def tmask(j):
        I(f"s_andn2_b64 exec, {'s[100:101]' if j >= 8 else '-1'}, s[{mk[j]}:{mk[j]+1}]")
    for j in range(10):
        tmask(j)
        I(f"ds_read_b32 v{vB+j}, v{vB+j} offset:{P1_OFT}")
    I("s_waitcnt lgkmcnt(0)")
    for j in range(10):
        tmask(j)
        I(f"v_lshl_add_u32 v{vQ+j}, v{vR+j}, 3, v{vB+j}")
        I(f"v_add_u32 v{vY+j}, -16, v{vQ+j}")
    I("s_mov_b64 exec, -1")
    H2 = 128 * CROW
    def rd16(dst, off):
        if CROW % 16 == 0:
            I(f"ds_read_b128 {vr(dst,4)}, v{vCA2 if off >= H2 else vCA} offset:{off - H2 if off >= H2 else off}")
        else:
            o8 = (off - H2 if off >= H2 else off) // 8
            I(f"ds_read2_b64 {vr(dst,4)}, v{vCA2 if off >= H2 else vCA} offset0:{o8} offset1:{o8+1}")
    def grp(g): return range(4) if g == 0 else (range(4, 8) if g == 1 else range(8, 10))
    def putx(g):
        VM.wait(f'I{g}')
        if g == 2:
            I("s_mov_b64 exec, s[100:101]")
        for j in grp(g):
            I(f"v_lshl_or_b32 v{vI_+j}, v{vI_+j}, 13, v{vO+j}")
            I(f"ds_write_b32 v{vQ+j}, v{vI_+j} offset:{P1_IMG}")
    def puty(g):
        VM.wait(f'A{g}')
        if g == 2 and XE:
            I("s_mov_b64 exec, s[100:101]")
        for j in grp(g):
            jj = j - (0, 4, 8)[g]
            areg = vA + (0, 2, 4)[g] + jj // 2
            I(f"ds_write_b16{'_d16_hi' if jj % 2 else ''} v{vY+j}, v{areg} offset:{P1_IMG + 20}")
    if XE:
        for g in range(3): putx(g)
        I("s_mov_b64 exec, -1")
        I("s_lshl_b32 s24, s3, 16")
        if CELL: I(f"s_add_u32 s24, s24, {CELL:#x}")
        I("s_add_u32 s26, s24, 32768")
        if XE == 2:
            for g in range(2): puty(g)
        I("s_waitcnt lgkmcnt(0)")
        I("s_barrier")
        rd16(8, 0)
        rd16(12, H2)
        if XE == 3:
            for g in range(2): puty(g)
        I(f"s_waitcnt lgkmcnt({1 if XE != 3 else 9})")
        I(f"buffer_store_dwordx4 {vr(8,4)}, v{vCG}, s[{sWS}:{sWS+3}], s24 offen {STF}"); VM.add('S0')
        I(f"s_waitcnt lgkmcnt({0 if XE != 3 else 8})")
        I(f"buffer_store_dwordx4 {vr(12,4)}, v{vCG}, s[{sWS}:{sWS+3}], s26 offen {STF}"); VM.add('S1')
        for g in range(0 if XE == 1 else 2, 3): puty(g)
    else:
        for g in range(3):
            putx(g)
            puty(g)
    I("s_mov_b64 exec, -1")
    aT = 78
    I(f"v_add_u32 v{aT}, {P1_TAIL}, v1")
    I("s_lshl_b32 s24, s3, 16")
    if CELL: I(f"s_add_u32 s24, s24, {CELL:#x}")
    I("s_add_u32 s26, s24, 32768")
    I(f"s_mul_i32 s27, s3, {TGS}")
    I(f"s_add_u32 s27, s27, {TG:#x}")
    I("s_lshl_b32 s29, s23, 3")
    I("s_waitcnt lgkmcnt(0)")
    stamp(SV1, 5)
    I("s_barrier")
    stamp(SV1, 6)
    vC = 8
    if not XE:
        rd16(vC, 0)
        rd16(vC+4, H2)
    I(f"ds_read2_b32 {vr(vC+20,2)}, v{vCM} offset0:0 offset1:128")
    rd16(vC+8, 16)
    rd16(vC+12, H2 + 16)
    I(f"ds_read_b128 {vr(vC+16,4)}, v{aT}")
    I(f"v_cmp_gt_u32_e64 s[32:33], s29, v1")
    if not XE:
        I("s_waitcnt lgkmcnt(5)")
        I(f"buffer_store_dwordx4 {vr(vC,4)}, v{vCG}, s[{sWS}:{sWS+3}], s24 offen {STF}")
        I("s_waitcnt lgkmcnt(4)")
        I(f"buffer_store_dwordx4 {vr(vC+4,4)}, v{vCG}, s[{sWS}:{sWS+3}], s26 offen {STF}")
    I("s_waitcnt lgkmcnt(2)")
    I(f"v_lshlrev_b32 v{vC+20}, v{vCS}, v{vC+20}")
    I(f"v_lshlrev_b32 v{vC+21}, v{vCS}, v{vC+21}")
    I(f"v_bfi_b32 v{vC+11}, s31, v{vC+11}, v{vC+20}")
    I(f"buffer_store_dwordx4 {vr(vC+8,4)}, v{vCG}, s[{sWS}:{sWS+3}], s24 offen offset:128 {STF}")
    I("s_waitcnt lgkmcnt(1)")
    I(f"v_bfi_b32 v{vC+15}, s31, v{vC+15}, v{vC+21}")
    I(f"buffer_store_dwordx4 {vr(vC+12,4)}, v{vCG}, s[{sWS}:{sWS+3}], s26 offen offset:128 {STF}")
    I("s_waitcnt lgkmcnt(0)")
    I("s_mov_b64 exec, s[32:33]")
    I(f"s_cbranch_execz {name}_done")
    I(f"buffer_store_dwordx4 {vr(vC+16,4)}, v1, s[{sWS}:{sWS+3}], s27 offen {STF}")
    I(f"v_mov_b32 v6, v1")
    L(f"{name}_tl")
    I(f"v_add_u32 v6, 16384, v6")
    I(f"v_add_u32 v{aT}, 16384, v{aT}")
    I(f"v_cmpx_gt_u32 vcc, s29, v6")
    I(f"s_cbranch_execz {name}_done")
    I(f"ds_read_b128 {vr(vC+24,4)}, v{aT}")
    I("s_waitcnt lgkmcnt(0)")
    I(f"buffer_store_dwordx4 {vr(vC+24,4)}, v6, s[{sWS}:{sWS+3}], s27 offen {STF}")
    I("s_waitcnt vmcnt(0)")
    I(f"s_branch {name}_tl")
    L(f"{name}_done")
    I("s_mov_b64 exec, -1")
    stamp(SV1, 7)
    if TS:
        I("s_waitcnt vmcnt(0)")
    stamp(SV1, 8)
    stamp_out(SV1, 0, 6, 24)
    L(f"{name}_end")
    I("s_endpgm")

def p1two(name):
    e(".p2align 8")
    e(f".type {name},@function")
    L(name)
    I(f"s_cmp_ge_u32 s2, {NB}")
    I(f"s_cbranch_scc1 {name}_end")
    stamp(SV1, 0)
    VM = Trk("vmcnt", 63)
    sOUT, sIN, sANG, sWS = 4, 8, 12, 16
    I(f"s_load_dwordx2 s[{sOUT}:{sOUT+1}], s[0:1], 16")
    I(f"s_load_dwordx2 s[{sIN}:{sIN+1}], s[0:1], 8")
    I(f"s_load_dwordx2 s[{sANG}:{sANG+1}], s[0:1], 32")
    I(f"s_load_dwordx2 s[{sWS}:{sWS+1}], s[0:1], 104")
    vO, vI_, vA, vB, vR, vQ, vY = 8, 20, 32, 38, 50, 62, 74
    vT = 86
    NX = 256 + (CH - 9216) // 4
    I("v_lshlrev_b32 v1, 4, v0")
    I("v_lshlrev_b32 v2, 3, v0")
    I("v_lshlrev_b32 v3, 2, v0")
    I("v_mov_b32 v4, 1")
    I("v_mov_b32 v5, 0")
    I("v_and_b32 v6, 0x3fc, v3")
    I(f"ds_write_b32 v6, v5 offset:{P1_CNT}")
    perm_id(3, 22)
    aX, a2, bX, b2 = vY, 103, vY+2, 102
    I(f"v_cmp_gt_u32 vcc, 256, v0")
    I(f"v_mov_b32 v{aX}, {8192*4}")
    I(f"v_mov_b32 v{bX}, {4096*4}")
    I(f"v_add_u32 v{a2}, {5120*4}, v1")
    I(f"v_cndmask_b32 v{aX}, v{aX}, v{bX}, vcc")
    I(f"v_add_u32 v{aX}, v{aX}, v1")
    I(f"v_lshrrev_b32 v{bX}, 1, v{aX}")
    I(f"v_add_u32 v{b2}, {5120*2}, v2")
    I(f"v_lshrrev_b32 v{vT}, 6, v0")
    I("s_mul_i32 s22, s3, 40000")
    I("s_mul_i32 s23, s3, 20000")
    I("s_movk_i32 s21, 0xfd8f")
    I(f"v_readfirstlane_b32 s20, v{vT}")
    I(f"v_cmp_gt_u32 vcc, {NX}, v0")
    I("s_mov_b64 s[100:101], vcc")
    I("s_waitcnt lgkmcnt(0)")
    srd_off(sOUT, T * 4, 22)
    srd_off(sIN, T * 4, 22)
    srd_off(sANG, T * 2, 23)
    srd_whole(sWS, WS_USED)
    so, si, sa = f"s[{sOUT}:{sOUT+3}]", f"s[{sIN}:{sIN+3}]", f"s[{sANG}:{sANG+3}]"
    def ld(nm):
        g = {'0': 0, 'X': 4, '2': 8}[nm[1]]
        a = {'0': 'v1', 'X': f'v{aX}', '2': f'v{a2}'}[nm[1]]
        b = {'0': 'v2', 'X': f'v{bX}', '2': f'v{b2}'}[nm[1]]
        tx = {'O': f"buffer_load_dwordx4 {vr(vO+g,4)}, {a}, {so}, 0 offen",
              'I': f"buffer_load_dwordx4 {vr(vI_+g,4)}, {a}, {si}, 0 offen",
              'A': f"buffer_load_dwordx2 {vr(vA+g//2,2)}, {b}, {sa}, 0 offen"}[nm[0]]
        if nm[1] == 'X': I("s_mov_b64 exec, s[100:101]")
        I(tx + (" " + LDF if LDF else "")); VM.add(nm)
        if nm[1] == 'X': I("s_mov_b64 exec, -1")
    sched = [[x for x in g.split(',') if x] for g in env('P1T', 'O0,OX|I0,A0,IX,AX||O2,I2,A2').split('|')] + [[], []]
    for nm in sched[0]: ld(nm)
    vCA, vCG, vCS, vCN = 90, 91, 92, 93
    I(f"v_lshrrev_b32 v{vT}, 2, v0")
    I(f"v_and_b32 v{vT+1}, 3, v0")
    I(f"v_mul_u32_u24 v{vCA}, {CROW}, v{vT}")
    I(f"v_lshl_add_u32 v{vCA}, v{vT+1}, 5, v{vCA}")
    I(f"v_add_u32 v{vCA}, {P1_IMG}, v{vCA}")
    I(f"v_lshlrev_b32 v{vCG}, 8, v{vT}")
    I(f"v_lshl_add_u32 v{vCG}, v{vT+1}, 4, v{vCG}")
    I(f"v_lshlrev_b32 v{vCN}, 2, v{vT}")
    I(f"v_and_b32 v{vCS}, 1, v0")
    I(f"v_lshlrev_b32 v{vCS}, 4, v{vCS}")
    I(f"v_xor_b32 v{vCS}, 16, v{vCS}")
    I("s_mov_b32 s31, 0xffff")
    I("s_lshl_b32 s24, s3, 16")
    if CELL: I(f"s_add_u32 s24, s24, {CELL:#x}")
    I(f"s_mul_i32 s27, s3, {TGS}")
    I(f"s_add_u32 s27, s27, {TG:#x}")
    I(f"v_mov_b32 v7, {HC // 2}")
    I("s_lshr_b32 s25, s20, 2")
    I("s_cmp_eq_u32 s25, 1")
    I("s_cselect_b64 s[98:99], -1, 0")
    I("s_barrier")
    for nm in sched[1]: ld(nm)
    stamp(SV1, 1)
    mk = [32 + 2*j for j in range(12)]
    def tag(c, j): return c + "0X2"[j // 4]
    def full(j): return 's[100:101]' if j // 4 == 1 else '-1'
    def opt(cls, lbl, body):
        q = list(VM.q)
        I(f"s_cmp_eq_u32 s25, {cls}" if cls >= 0 else "s_cmp_lt_u32 s25, 2")
        I(f"s_cbranch_scc0 {name}_{lbl}")
        body()
        L(f"{name}_{lbl}")
        I("s_mov_b64 exec, -1")
        VM.q = q
    def ranks(js):
        for j in js:
            VM.wait(tag('O', j))
            if j % 4 == 0: I(f"s_mov_b64 exec, {full(j)}")
            t = vT + (j % 4)
            I(f"v_mul_hi_u32_u24 v{t}, 0x68db8c, v{vO+j}")
            I(f"v_lshlrev_b32 v{vB+j}, 2, v{t}")
            I(f"v_mad_i32_i24 v{vO+j}, v{t}, s21, v{vO+j}")
            I(f"ds_add_rtn_u32 v{vR+j}, v{vB+j}, v4 offset:{P1_CNT}")
            I(f"v_mul_u32_u24 v{vQ+j}, {CROW}, v{t}")
        I("s_mov_b64 exec, -1")
    def head_addrs(js):
        for j in js:
            t, u = vT + (j % 2) * 2, vT + (j % 2) * 2 + 1
            I(f"v_cmp_gt_u32_e64 s[{mk[j]}:{mk[j]+1}], {HC}, v{vR+j}")
            I(f"v_subrev_u32 v{t}, {HC//2 - 1}, v{vR+j}")
            I(f"v_med3_i32 v{t}, v{t}, 0, 1")
            I(f"v_mad_u32_u24 v{t}, v{t}, 12, v{vR+j}")
            I(f"v_and_b32 v{u}, 3, v{t}")
            I(f"v_lshl_add_u32 v{vQ+j}, v{u}, 5, v{vQ+j}")
            I(f"v_and_b32 v{u}, 32, v{t}")
            I(f"v_lshl_add_u32 v{vQ+j}, v{u}, 2, v{vQ+j}")
            I(f"v_bfe_u32 v{t}, v{t}, 2, 3")
            I(f"v_lshl_add_u32 v{vY+j}, v{t}, 1, v{vQ+j}")
            I(f"v_lshl_add_u32 v{vQ+j}, v{t}, 2, v{vQ+j}")
    def conv(js):
        I("s_mov_b64 exec, -1")
        for j in js:
            VM.wait(tag('I', j))
            I(f"v_lshl_or_b32 v{vI_+j}, v{vI_+j}, 13, v{vO+j}")
    def place(js, mask):
        for j in js:
            for m in mask(j): I(m)
            I(f"ds_write_b32 v{vQ+j}, v{vI_+j} offset:{P1_IMG}")
            VM.wait(tag('A', j))
            I(f"ds_write_b16{'_d16_hi' if j % 2 else ''} v{vY+j}, v{vA+j//2} offset:{P1_IMG + 20}")
        I("s_mov_b64 exec, -1")
    def rd16(dst, off):
        if CROW % 16 == 0:
            I(f"ds_read_b128 {vr(dst,4)}, v{vCA} offset:{off}")
        else:
            I(f"ds_read2_b64 {vr(dst,4)}, v{vCA} offset0:{off//8} offset1:{off//8+1}")
    G0, GX, G2 = range(0, 4), range(4, 8), range(8, 12)
    hmask = lambda j: [f"s_and_b64 exec, {full(j)}, s[{mk[j]}:{mk[j]+1}]"]
    ranks(G0)
    opt(0, "x1a", lambda: ranks(GX))
    I("s_waitcnt lgkmcnt(0)")
    stamp(SV1, 2)
    for nm in sched[2]: ld(nm)
    head_addrs(G0)
    conv(G0)
    place(G0, hmask)
    def x1b():
        head_addrs(GX); conv(GX); place(GX, hmask)
    opt(0, "x1b", x1b)
    for nm in sched[3]: ld(nm)
    I("s_waitcnt lgkmcnt(0)")
    stamp(SV1, 3)
    I("s_barrier")
    vC = 94
    I(f"ds_read_b32 v102, v{vCN} offset:{P1_CNT}")
    I(f"ds_max_u32 v{vCN}, v7 offset:{P1_CNT}")
    rd16(vC, 0)
    rd16(vC+4, 16)
    I("s_waitcnt lgkmcnt(0)")
    I("s_barrier")
    I(f"v_lshlrev_b32 v102, 16, v102")
    I(f"buffer_store_dwordx4 {vr(vC,4)}, v{vCG}, s[{sWS}:{sWS+3}], s24 offen {STF}"); VM.add('S0')
    I(f"v_bfi_b32 v{vC+7}, s31, v{vC+7}, v102")
    I(f"buffer_store_dwordx4 {vr(vC+4,4)}, v{vCG}, s[{sWS}:{sWS+3}], s24 offen offset:64 {STF}"); VM.add('S1')
    stamp(SV1, 4)
    opt(1, "x2a", lambda: ranks(GX))
    ranks(G2)
    I("s_waitcnt lgkmcnt(0)")
    I("s_barrier")
    stamp(SV1, 5)
    c, o = 94, 98
    I("v_and_b32 v6, 63, v0")
    I("v_lshlrev_b32 v6, 4, v6")
    I(f"ds_read_b128 {vr(c,4)}, v6 offset:{P1_CNT}")
    head_addrs(G2)
    def x2b():
        head_addrs(GX); conv(GX)
    opt(1, "x2b", x2b)
    I("s_waitcnt lgkmcnt(0)")
    x = vT
    for k in range(4):
        I(f"v_subrev_u32 v{x+k}, {HC}, v{c+k}")
    for k in range(4):
        I(f"v_max_i32 v{x+k}, 0, v{x+k}")
    I(f"v_add_u32 v{o+2}, v{x}, v{x+1}")
    I(f"v_add_u32 v{o+3}, v{o+2}, v{x+2}")
    I(f"v_add_u32 v102, v{o+3}, v{x+3}")
    I("v_mov_b32 v103, v102")
    wave_scan(103)
    I(f"v_sub_u32 v{o}, v103, v102")
    I(f"v_readlane_b32 s23, v103, 63")
    I(f"v_add_u32 v{o+1}, v{o}, v{x}")
    I(f"v_add_u32 v{o+2}, v{o}, v{o+2}")
    I(f"v_add_u32 v{o+3}, v{o}, v{o+3}")
    for k in range(4):
        I(f"v_lshl_or_b32 v{c+k}, v{c+k}, 16, v{o+k}")
    I(f"s_mov_b32 s22, {P1_TAIL - P1_IMG - 8 * HC}")
    for k in range(4):
        I(f"v_lshl_add_u32 v{o+k}, v{o+k}, 3, s22")
    I(f"ds_write_b128 v6, {vr(o,4)} offset:{P1_OFT}")
    I(f"ds_write_b128 v6, {vr(c,4)} offset:{P1_MT}")
    def tmask(j):
        return f"s_andn2_b64 exec, {full(j)}, s[{mk[j]}:{mk[j]+1}]"
    ALL = list(G2) + list(GX) + list(G0)
    for j in ALL:
        I(tmask(j))
        I(f"ds_read_b32 v{vB+j}, v{vB+j} offset:{P1_OFT}")
    I("s_mov_b64 exec, -1")
    conv(G2)
    I("s_waitcnt lgkmcnt(0)")
    for j in ALL:
        I(tmask(j))
        I(f"v_lshl_add_u32 v{vQ+j}, v{vR+j}, 3, v{vB+j}")
        I(f"v_add_u32 v{vY+j}, -16, v{vQ+j}")
    I("s_mov_b64 exec, -1")
    place(G2, lambda j: ["s_mov_b64 exec, -1"])
    def x2c():
        VM.wait('AX')
        place(GX, lambda j: [f"s_orn2_b64 exec, s[98:99], s[{mk[j]}:{mk[j]+1}]", f"s_and_b64 exec, exec, {full(j)}"])
    opt(-1, "x2c", x2c)
    place(G0, lambda j: [tmask(j)])
    aT = 86
    I(f"v_add_u32 v{aT}, {P1_TAIL}, v1")
    I(f"v_add_u32 v{vCA}, 128, v{vCA}")
    I("s_lshl_b32 s29, s23, 3")
    I("s_waitcnt lgkmcnt(0)")
    stamp(SV1, 6)
    I("s_barrier")
    vC = 8
    rd16(vC, 0)
    I(f"ds_read_b32 v{vC+8}, v{vCN} offset:{P1_MT}")
    rd16(vC+4, 16)
    I(f"ds_read_b128 {vr(vC+16,4)}, v{aT}")
    I(f"v_cmp_gt_u32_e64 s[32:33], s29, v1")
    I("s_waitcnt lgkmcnt(3)")
    I(f"buffer_store_dwordx4 {vr(vC,4)}, v{vCG}, s[{sWS}:{sWS+3}], s24 offen offset:128 {STF}")
    I("s_waitcnt lgkmcnt(1)")
    I(f"v_lshlrev_b32 v{vC+8}, v{vCS}, v{vC+8}")
    I(f"v_bfi_b32 v{vC+7}, s31, v{vC+7}, v{vC+8}")
    I(f"buffer_store_dwordx4 {vr(vC+4,4)}, v{vCG}, s[{sWS}:{sWS+3}], s24 offen offset:192 {STF}")
    I("s_waitcnt lgkmcnt(0)")
    I("s_mov_b64 exec, s[32:33]")
    I(f"s_cbranch_execz {name}_done")
    I(f"buffer_store_dwordx4 {vr(vC+16,4)}, v1, s[{sWS}:{sWS+3}], s27 offen {STF}")
    I(f"v_mov_b32 v6, v1")
    L(f"{name}_tl")
    I(f"v_add_u32 v6, 16384, v6")
    I(f"v_add_u32 v{aT}, 16384, v{aT}")
    I(f"v_cmpx_gt_u32 vcc, s29, v6")
    I(f"s_cbranch_execz {name}_done")
    I(f"ds_read_b128 {vr(vC+24,4)}, v{aT}")
    I("s_waitcnt lgkmcnt(0)")
    I(f"buffer_store_dwordx4 {vr(vC+24,4)}, v6, s[{sWS}:{sWS+3}], s27 offen {STF}")
    I("s_waitcnt vmcnt(0)")
    I(f"s_branch {name}_tl")
    L(f"{name}_done")
    I("s_mov_b64 exec, -1")
    stamp(SV1, 7)
    if TS:
        I("s_waitcnt vmcnt(0)")
    stamp(SV1, 8)
    stamp_out(SV1, 0, 6, 24)
    L(f"{name}_end")
    I("s_endpgm")

P2_CNT = 0
P2_FLAG = 2560
P2_KC = 2576
NKEY, KSH, KCAP = 160, 10, 64
NOV = 1024
P2_OVF = P2_KC + 656
P2_GA = P2_OVF + EPB * 16
P2_GB = P2_GA + EPB * 16
P2_LST = (P2_GB + EPB * 8 + 15) // 16 * 16
P2_PAY = P2_LST + 16 * WIN
P2_LDS = P2_PAY + (CAPE + 1) * RS
assert P2_LDS <= 163840, P2_LDS
assert CAPE * RS <= 8 * 16384 <= (CAPE + 1) * RS
assert (E - 1) >> KSH < NKEY - 0 and NKEY * KCAP == 16 * 10 * 64

def edge_tables(vDist, sC, sWB, sWR, vGAo, vGBo, vRB, vG, a, b_, pk, gt, tmps):
    I(f"v_lshlrev_b32 v{vDist}, 16, v{vDist}")
    t0, t1 = tmps[0], tmps[1]
    for p in range(4):
        I(f"s_lshl_b32 s{t0}, s{sC+p}, 16")
        I(f"s_and_b32 s{t1}, s{sC+p}, 0xffff0000")
        I(f"v_subrev_f32 v{a}, s{t0}, v{vDist}")
        I(f"v_subrev_f32 v{b_}, s{t1}, v{vDist}")
        I(f"v_cvt_pk_bf16_f32 v{pk}, v{a}, v{b_}")
        I(f"v_lshlrev_b32 v{a}, 16, v{pk}")
        I(f"v_and_b32 v{b_}, 0xffff0000, v{pk}")
        I(f"v_mul_f32 v{a}, v{a}, v{a}")
        I(f"v_mul_f32 v{b_}, v{b_}, v{b_}")
        I(f"v_cvt_pk_bf16_f32 v{pk}, v{a}, v{b_}")
        I(f"v_lshlrev_b32 v{a}, 16, v{pk}")
        I(f"v_and_b32 v{b_}, 0xffff0000, v{pk}")
        I(f"v_mul_f32 v{a}, 0xc1200000, v{a}")
        I(f"v_mul_f32 v{b_}, 0xc1200000, v{b_}")
        I(f"v_cvt_pk_bf16_f32 v{pk}, v{a}, v{b_}")
        I(f"v_lshlrev_b32 v{a}, 16, v{pk}")
        I(f"v_and_b32 v{b_}, 0xffff0000, v{pk}")
        I(f"v_mul_f32 v{a}, 0x3fb8aa3b, v{a}")
        I(f"v_mul_f32 v{b_}, 0x3fb8aa3b, v{b_}")
        I(f"v_exp_f32 v{a}, v{a}")
        I(f"v_exp_f32 v{b_}, v{b_}")
        I("s_nop 0")
        I(f"v_cvt_pk_bf16_f32 v{vRB+p}, v{a}, v{b_}")
    ti = 0
    for p in range(4):
        for l in range(3):
            for dd in range(2):
                A = sWB + (6*p + l) * 2 + dd
                B = sWB + (6*p + 3 + l) * 2 + dd
                for hi in range(2):
                    d = 2*dd + hi
                    t = tmps[ti % 3]; ti += 1
                    I(f"s_pack_{'hh' if hi else 'll'}_b32_b16 s{t}, s{A}, s{B}")
                    if p == 0:
                        I(f"v_dot2_f32_bf16 v{vG+4*l+d}, v{vRB+p}, s{t}, 0")
                    else:
                        I(f"v_dot2c_f32_bf16 v{vG+4*l+d}, s{t}, v{vRB+p}")
    for p in range(4):
        for dd in range(2):
            A = sWR + (2*p) * 2 + dd
            B = sWR + (2*p + 1) * 2 + dd
            for hi in range(2):
                d = 2*dd + hi
                t = tmps[ti % 3]; ti += 1
                I(f"s_pack_{'hh' if hi else 'll'}_b32_b16 s{t}, s{A}, s{B}")
                if p == 0:
                    I(f"v_dot2_f32_bf16 v{gt+d}, v{vRB+p}, s{t}, 0")
                else:
                    I(f"v_dot2c_f32_bf16 v{gt+d}, s{t}, v{vRB+p}")
    for d in range(4):
        I(f"v_cvt_pk_bf16_f32 v{vGAo+d}, v{vG+d}, v{vG+4+d}")
    I(f"v_cvt_pk_bf16_f32 v{vGBo}, v{vG+8}, v{vG+9}")
    I(f"v_cvt_pk_bf16_f32 v{vGBo+1}, v{vG+10}, v{vG+11}")
    I(f"v_cvt_pk_bf16_f32 v{vGBo+2}, v{gt}, v{gt+1}")
    I(f"v_cvt_pk_bf16_f32 v{vGBo+3}, v{gt+2}, v{gt+3}")

def edge_tables_mf(vDist, sC, vA, vRB, vG, gt, vGAo, vGBo, a, b_, pk, tmps, sK):
    I(f"v_lshlrev_b32 v{vDist}, 16, v{vDist}")
    t0, t1 = tmps
    assert a % 2 == 0 and b_ == a + 1 and t0 % 2 == 0 and t1 == t0 + 1
    if PKR:
        I(f"s_mov_b32 s{sK}, 0xc1200000")
        I(f"s_mov_b32 s{sK+1}, 0xc1200000")
        I(f"s_mov_b32 s{sK+2}, 0x3fb8aa3b")
        I(f"s_mov_b32 s{sK+3}, 0x3fb8aa3b")
    def rnd():
        I(f"v_cvt_pk_bf16_f32 v{pk}, v{a}, v{b_}")
        I(f"v_lshlrev_b32 v{a}, 16, v{pk}")
        I(f"v_and_b32 v{b_}, 0xffff0000, v{pk}")
    for p in range(4):
        I(f"s_lshl_b32 s{t0}, s{sC+p}, 16")
        I(f"s_and_b32 s{t1}, s{sC+p}, 0xffff0000")
        I(f"v_subrev_f32 v{a}, s{t0}, v{vDist}")
        I(f"v_subrev_f32 v{b_}, s{t1}, v{vDist}")
        rnd()
        if PKR: I(f"v_pk_mul_f32 {vr(a,2)}, {vr(a,2)}, {vr(a,2)}")
        else:
            I(f"v_mul_f32 v{a}, v{a}, v{a}")
            I(f"v_mul_f32 v{b_}, v{b_}, v{b_}")
        rnd()
        if PKR: I(f"v_pk_mul_f32 {vr(a,2)}, {vr(a,2)}, {sr(sK,2)}")
        else:
            I(f"v_mul_f32 v{a}, 0xc1200000, v{a}")
            I(f"v_mul_f32 v{b_}, 0xc1200000, v{b_}")
        rnd()
        if PKR: I(f"v_pk_mul_f32 {vr(a,2)}, {vr(a,2)}, {sr(sK+2,2)}")
        else:
            I(f"v_mul_f32 v{a}, 0x3fb8aa3b, v{a}")
            I(f"v_mul_f32 v{b_}, 0x3fb8aa3b, v{b_}")
        I(f"v_exp_f32 v{a}, v{a}")
        I(f"v_exp_f32 v{b_}, v{b_}")
        I("s_nop 0")
        I(f"v_cvt_pk_bf16_f32 v{vRB+p}, v{a}, v{b_}")
    I("s_nop 1")
    D = [vG, vG + 4, vG + 8, gt]
    for g in range(4):
        I(f"v_mfma_f32_4x4x4_16b_bf16 {vr(D[g],4)}, {vr(vA+4*g,2)}, {vr(vRB,2)}, 0")
    for g in range(4):
        I(f"v_mfma_f32_4x4x4_16b_bf16 {vr(D[g],4)}, {vr(vA+4*g+2,2)}, {vr(vRB+2,2)}, {vr(D[g],4)}")
    I("s_nop 4")
    for d in range(4):
        I(f"v_cvt_pk_bf16_f32 v{vGAo+d}, v{vG+d}, v{vG+4+d}")
    I(f"v_cvt_pk_bf16_f32 v{vGBo}, v{vG+8}, v{vG+9}")
    I(f"v_cvt_pk_bf16_f32 v{vGBo+1}, v{vG+10}, v{vG+11}")
    I("s_nop 1")
    I(f"v_cvt_pk_bf16_f32 v{vGBo+2}, v{gt}, v{gt+1}")
    I(f"v_cvt_pk_bf16_f32 v{vGBo+3}, v{gt+2}, v{gt+3}")

class Slot:
    def __init__(self, tag, x, y, yhi, xtag, ytag, md, rk, mask):
        self.tag, self.x, self.y, self.yhi, self.xtag, self.ytag, self.md, self.rk, self.mask = tag, x, y, yhi, xtag, ytag, md, rk, mask

def p2(name):
    e(".p2align 8")
    e(f".type {name},@function")
    L(name)
    sWS, sM, sOUT, sDI = 4, 8, 12, 16
    sPD = 20
    sC = 28
    sWUP, sWDP = 16, 24
    sRAW = 72
    sWave, sW0, sNW, sNwin, sT0, sMore = 32, 34, 35, 36, 37, 39
    sMASK = 40
    sOM = 70
    sTX, sRS, sG1 = 88, 89, 24
    sCN = 72
    sWS_, sWR_ = 92, 96
    sEM = 100
    vLane, vID, vOne, vE8 = 1, 2, 4, 5
    vM, vGate, vAcc = 6, 8, 10
    vLrd, vCnt, vPre, vD, vK, vR16 = 14, 15, 16, 17, 18, 19
    vDist = 20
    vTid4 = 22
    vMD, vRK = 24, 54
    vH, vTL = 72, 88
    vCC, vCM = 124, 126
    vGS, vT = 92, 108
    vGAl, vGBl = 92, 96
    vW, vTa, vTr = 28, 29, 30
    vWD = vT + 14
    vXa, vXb, vCa = vT + 12, vT + 13, vT + 15
    SV = 21
    VM = Trk("vmcnt", 63)
    LG = Trk("lgkmcnt", 15)
    assert 0 <= NU <= 2 and UPRE <= NU
    def hgw(s): return s // 5, s % 5
    def hx(h):
        g, w = hgw(h)
        return vH + 8 * g + w
    def hxtag(h):
        g, w = hgw(h)
        return f'H{g}{w // 4}'
    def hy(h):
        g, w = hgw(h)
        if w == 4: return vH + 8*g + 7, 0
        return vH + 8*g + 5 + w // 2, w % 2
    def msk(i): return f"s[{sMASK+2*i}:{sMASK+2*i+1}]"
    NSS = 11
    NW = NU + NSS + NT
    live = {hx(h) for h in range(NU)} | {hy(h)[0] for h in range(NU)}
    free = [r for r in list(range(vH, vH + 16, 2)) + list(range(58, 72, 2)) if r not in live and r + 1 not in live]
    assert len(free) >= NSS
    slots = []
    for h in range(NU):
        slots.append(Slot(f'U{h}', hx(h), hy(h)[0], hy(h)[1], hxtag(h), f'H{hgw(h)[0]}1', vMD + 2*h, vRK + h % 4, msk(h)))
    for j in range(NSS):
        w = NU + j
        slots.append(Slot(f'S{j}', free[j], free[j] + 1, 0, None, None, vMD + 2*w, vRK + w % 4, msk(w)))
    for j in range(NT):
        w = NU + NSS + j
        slots.append(Slot(f'T{j}', vTL + 2*j, vTL + 2*j + 1, 0, f'TX{j}', f'TX{j}', vMD + 2*w, (vRK + w % 4) if j == 0 else 23, msk(w)))
    assert vMD + 2 * NW <= vRK
    TS0, TS1 = slots[NW - 2], slots[NW - 1]
    SS = slots[NU:NU + NSS]
    SB = 8 * (NKEY * KCAP + NOV)
    I(f"s_cmp_ge_u32 s2, {NB}")
    I(f"s_cbranch_scc1 {name}_end")
    stamp(SV, 0)
    if LPRIO: I(f"s_setprio {LPRIO}")
    I(f"s_load_dwordx2 s[{sWS}:{sWS+1}], s[0:1], 104")
    I(f"s_load_dwordx2 s[{sM}:{sM+1}], s[0:1], 0")
    I(f"s_load_dwordx2 s[{sDI}:{sDI+1}], s[0:1], 24")
    I(f"s_load_dwordx2 s[34:35], s[0:1], 40")
    I(f"s_load_dwordx2 s[{sWR_}:{sWR_+1}], s[0:1], 56")
    I(f"s_load_dwordx2 s[{sWS_}:{sWS_+1}], s[0:1], 64")
    I(f"s_load_dwordx4 s[{sPD}:{sPD+3}], s[0:1], 72")
    I(f"s_load_dwordx2 s[{sOUT}:{sOUT+1}], s[0:1], 88")
    perm_id(3, 24)
    I(f"v_and_b32 v{vLane}, 63, v0")
    I(f"v_lshrrev_b32 v{vT}, 6, v0")
    I(f"v_lshlrev_b32 v{vTid4}, 2, v0")
    I(f"v_lshlrev_b32 v{vE8}, 3, v0")
    I(f"v_lshlrev_b32 v{vT+4}, 4, v0")
    I(f"v_readfirstlane_b32 s{sWave}, v{vT}")
    I(f"v_mov_b32 v{vT+8}, 0")
    I(f"v_cmp_gt_u32 vcc, 164, v0")
    I("s_mov_b64 exec, vcc")
    I(f"ds_write_b32 v{vTid4}, v{vT+8} offset:{P2_KC}")
    I("s_mov_b64 exec, -1")
    def head_addr(dst, t0, t1, st=25):
        I(f"v_lshrrev_b32 v{dst}, 3, v{vLane}")
        I(f"v_lshl_add_u32 v{t1}, v{vT}, 4, v{dst}")
        I(f"v_lshlrev_b32 v{dst}, 16, v{t1}")
        if TWO:
            I(f"v_and_b32 v{t0}, 3, v{vLane}")
            I(f"v_lshl_add_u32 v{dst}, v{t0}, 4, v{dst}")
            I(f"v_and_b32 v{t0}, 4, v{vLane}")
            I(f"v_lshl_add_u32 v{dst}, v{t0}, 5, v{dst}")
        else:
            I(f"v_and_b32 v{t0}, 7, v{vLane}")
            I(f"v_lshl_add_u32 v{dst}, v{t0}, 4, v{dst}")
        I(f"s_lshl_b32 s{st}, s3, 8")
        if CELL: I(f"s_add_u32 s{st}, s{st}, {CELL:#x}")
        I(f"v_add_u32 v{dst}, s{st}, v{dst}")
    head_addr(vT + 5, vT + 1, vT + 6)
    I(f"s_mov_b32 s{sG1}, 0x80000")
    I(f"s_mul_i32 s26, s3, {EPB*8}")
    I(f"s_mul_i32 s27, s3, {EPB*2}")
    I(f"v_add_u32 v{vM}, s26, v{vE8}")
    I(f"v_lshl_add_u32 v{vDist}, v0, 1, s27")
    I(f"v_cmp_gt_u32 vcc, {EPB}, v0")
    I(f"s_mov_b64 s[{sEM}:{sEM+1}], vcc")
    q, r_, l_ = vT + 8, vT + 9, vT + 10
    I(f"v_lshrrev_b32 v{q}, 1, v{vLane}")
    I(f"v_mul_u32_u24 v{r_}, 43, v{q}")
    I(f"v_lshrrev_b32 v{r_}, 7, v{r_}")
    I(f"v_mul_u32_u24 v{l_}, 3, v{r_}")
    I(f"v_sub_u32 v{l_}, v{q}, v{l_}")
    I(f"v_cmp_gt_u32 vcc, 48, v{vLane}")
    I(f"v_subrev_u32 v{q}, 24, v{q}")
    I("s_nop 0")
    I(f"v_cndmask_b32 v{r_}, v{q}, v{r_}, vcc")
    I(f"v_cndmask_b32 v{l_}, 3, v{l_}, vcc")
    I(f"v_and_b32 v{q}, 1, v{vLane}")
    I(f"v_lshlrev_b32 v{vTa}, 6, v{l_}")
    I(f"v_lshl_add_u32 v{vTa}, v{q}, 5, v{vTa}")
    I(f"v_lshl_add_u32 v{vTa}, v{r_}, 1, v{vTa}")
    I(f"v_lshl_add_u32 v{vTa}, v{vT}, 10, v{vTa}")
    I(f"v_and_b32 v{q}, 3, v{vLane}")
    I(f"v_lshlrev_b32 v{vTr}, 4, v{q}")
    I(f"v_lshl_add_u32 v{vTr}, v{vT}, 10, v{vTr}")
    I(f"v_lshlrev_b32 v{vW}, 2, v{vLane}")
    I(f"v_subrev_u32 v{q}, 192, v{vW}")
    I(f"v_cndmask_b32 v{vW}, v{q}, v{vW}, vcc")
    I("s_waitcnt lgkmcnt(0)")
    srd_whole(sWS, WS_USED)
    srd_whole(sM, E * 8)
    srd_whole(sDI, E * 2)
    srd_whole(sWS_, 192)
    srd_whole(sWR_, 64)
    I(f"s_cmp_ge_u32 s{sWave}, 10")
    I(f"s_cbranch_scc1 {name}_nowv")
    I("s_mov_b32 exec_lo, -1")
    I("s_mov_b32 exec_hi, 0xffff")
    I(f"buffer_load_dword v{vW}, v{vW}, s[{sWS_}:{sWS_+3}], 0 offen")
    I("s_mov_b32 exec_lo, 0")
    I("s_mov_b32 exec_hi, 0xffff0000")
    I(f"buffer_load_dword v{vW}, v{vW}, s[{sWR_}:{sWR_+3}], 0 offen")
    I("s_mov_b64 exec, -1")
    L(f"{name}_nowv")
    I(f"s_cmp_lt_u32 s{sWave}, {B0W}")
    I(f"s_cbranch_scc1 {name}_b0a")
    I("s_barrier")
    L(f"{name}_b0a")
    first = {
      'H00': f"buffer_load_dwordx4 {vr(vH,4)}, v{vT+5}, s[{sWS}:{sWS+3}], 0 offen {RLF}",
      'H01': f"buffer_load_dwordx4 {vr(vH+4,4)}, v{vT+5}, s[{sWS}:{sWS+3}], 0 offen offset:{L1OFF} {RLF}",
      'H10': f"buffer_load_dwordx4 {vr(vH+8,4)}, v{vT+5}, s[{sWS}:{sWS+3}], s{sG1} offen {RLF}",
      'H11': f"buffer_load_dwordx4 {vr(vH+12,4)}, v{vT+5}, s[{sWS}:{sWS+3}], s{sG1} offen offset:{L1OFF} {RLF}",
      'DI': f"buffer_load_ushort v{vDist}, v{vDist}, s[{sDI}:{sDI+3}], 0 offen",
      'M': f"buffer_load_dwordx2 {vr(vM,2)}, v{vM}, s[{sM}:{sM+3}], 0 offen",
    }
    for nm in LORD.split(','):
        if nm == 'M' and MPOS >= 0: continue
        if nm in ('DI', 'M'): I(f"s_mov_b64 exec, s[{sEM}:{sEM+1}]")
        I(first[nm]); VM.add(nm)
        if nm in ('DI', 'M'): I("s_mov_b64 exec, -1")
    if LPRIO: I("s_setprio 0")
    I(f"s_cmp_ge_u32 s{sWave}, {B0W}")
    I(f"s_cbranch_scc1 {name}_b0b")
    I("s_barrier")
    L(f"{name}_b0b")
    I(f"s_cmp_ge_u32 s{sWave}, 10")
    I(f"s_cbranch_scc1 {name}_now")
    I(f"s_load_dwordx4 s[{sC}:{sC+3}], s[34:35], 0")
    I(f"s_load_dword s33, s[{sPD}:{sPD+1}], 0")
    I(f"s_load_dword s33, s[{sPD+2}:{sPD+3}], 0")
    L(f"{name}_now")
    I(f"s_add_u32 s{sOUT}, s{sOUT}, s26")
    I(f"s_addc_u32 s{sOUT+1}, s{sOUT+1}, 0")
    I(f"s_mov_b32 s{sOUT+2}, {EPB*8}")
    I(f"s_mov_b32 s{sOUT+3}, {W3:#x}")
    stamp(SV, 1)
    I(f"v_lshrrev_b32 v{vR16}, 2, v{vLane}")
    I(f"v_and_b32 v{vT+2}, 1, v{vR16}")
    I(f"v_lshl_add_u32 v{vT+2}, v{vT+2}, 3, v{vT+6}")
    I(f"v_mul_u32_u24 v{vD}, {CH}, v{vT+2}")
    I(f"v_and_b32 v{vK}, 3, v{vLane}")
    I(f"v_lshlrev_b32 v{vR16}, 4, v{vR16}")
    for i in range(4):
        I(f"v_mov_b32 v{vT+8+i}, 0")
    I(f"v_mov_b32 v{vOne}, 1")
    I(f"s_mov_b64 exec, s[{sEM}:{sEM+1}]")
    I(f"ds_write_b128 v{vT+4}, {vr(vT+8,4)} offset:{P2_OVF}")
    I("s_mov_b64 exec, -1")
    I(f"v_cmp_gt_u32 vcc, 644, v0")
    I("s_mov_b64 exec, vcc")
    I(f"ds_write_b32 v{vTid4}, v{vT+8} offset:{P2_CNT}")
    I("s_mov_b64 exec, -1")
    def zero_fill(z, a16, t0, t1):
        I(f"v_add_u32 v{t0}, {P2_PAY:#x}, v{a16}")
        I(f"v_add_u32 v{t1}, {P2_PAY + 65536:#x}, v{a16}")
        for k in range(4):
            I(f"ds_write_b128 v{t0}, {vr(z,4)} offset:{16384*k}")
        for k in range(4):
            I(f"ds_write_b128 v{t1}, {vr(z,4)} offset:{16384*k}")
    a0, a1 = SB, CAPE * RS
    assert a0 % 16 == 0 and a1 % 16 == 0
    base = None
    while a0 < a1:
        if base is None or a0 - base > 65535:
            base = a0
            I(f"v_add_u32 v{vT+2}, {P2_PAY + base:#x}, v{vT+4}")
        n = min(16384, a1 - a0)
        if n < 16384:
            I(f"v_cmp_gt_u32 vcc, {n // 16}, v0")
            I("s_mov_b64 exec, vcc")
        I(f"ds_write_b128 v{vT+2}, {vr(vT+8,4)} offset:{a0 - base}")
        a0 += n
    I("s_mov_b64 exec, -1")
    for i in range(4):
        I(f"v_mov_b32 v{vAcc+i}, 0")
    I(f"v_lshl_add_u32 v{vLrd}, v{vT}, 7, v{vLane}")
    assert WIN == 128
    I(f"v_lshlrev_b32 v{vT+0}, 4, v{vK}")
    I(f"v_mov_b32 v{vT+1}, 0x3f80")
    I(f"v_cmp_gt_u32 vcc, 2, v{vK}")
    I(f"v_lshlrev_b32 v{vT+3}, v{vT+0}, v{vT+1}")
    I("s_nop 0")
    I(f"v_cndmask_b32 v{vID}, 0, v{vT+3}, vcc")
    I(f"v_cndmask_b32_e64 v{vID+1}, v{vT+3}, 0, vcc")
    done_cc = set()
    def cell_counts(g):
        if g in done_cc: return
        done_cc.add(g)
        VM.wait(f'H{g}1')
        I(f"v_lshrrev_b32 v{vCM+g}, 16, v{vH+8*g+7}")
        if TWO:
            I(f"v_and_b32 v{vCC+g}, 4, v{vLane}")
            I(f"v_lshlrev_b32 v{vCC+g}, 2, v{vCC+g}")
            I(f"v_and_or_b32 v{vCC+g}, v{vLane}, 7, v{vCC+g}")
        else:
            I(f"v_and_b32 v{vCC+g}, 7, v{vLane}")
            I("s_nop 0")
        I(f"v_sub_u32_dpp v{vCC+g}, v{vCM+g}, v{vCC+g} quad_perm:[1,1,3,3] row_mask:0xf bank_mask:0xf")
    def gather(s, fl=None):
        if s.xtag: VM.wait(s.xtag)
        I(f"s_mov_b64 exec, {s.mask}")
        I(f"v_lshrrev_b32 v{s.md}, 10, v{s.x}")
        if NOG == 2 and fl is None:
            I(f"v_and_b32 v{s.md}, 0x3ff8, v{s.md}")
        I(f"v_and_b32 v{s.x}, 0x3ff, v{s.x}")
        I(f"buffer_load_dwordx2 {vr(s.md,2)}, v{s.md}, s[{sM}:{sM+3}], 0 offen {GLF if fl is None else fl}")
        I(f"v_lshlrev_b32 v{s.x}, 3, v{s.x}")
        VM.add(f'G{s.tag}')
    def head_mask(h, m):
        g, w = hgw(h)
        I("s_mov_b64 exec, -1")
        cell_counts(g)
        I(f"v_cmp_lt_i32_e64 {m}, {HSTEP*w}, v{vCC+g}")
    def rank(s):
        t = vT + 8 + (s.rk % 2)
        I(f"s_mov_b64 exec, {s.mask}")
        I(f"v_lshrrev_b32 v{t}, 1, v{s.x}")
        I(f"ds_add_rtn_u32 v{s.rk}, v{t}, v{vOne} offset:{P2_CNT}")
        LG.add(f'R{s.tag}')
    def tails_addr(lbl):
        lo, hi, ad = vT, vT + 1, vT + 2
        I(f"s_add_u32 s{sT0}, s{sW0}, {WIN}")
        I(f"v_sub_u32 v{lo}, s{sW0}, v{vPre}")
        I(f"v_sub_u32 v{hi}, s{sT0}, v{vPre}")
        I(f"v_max_i32 v{lo}, 0, v{lo}")
        I(f"v_min_i32 v{hi}, v{hi}, v{vCnt}")
        I(f"v_add_u32 v{lo}, v{lo}, v{vK}")
        I(f"v_add_u32 v{ad}, v{lo}, v{vPre}")
        I(f"v_subrev_u32 v{ad}, s{sW0}, v{ad}")
        I(f"v_lshl_add_u32 v{ad}, s{sWave}, 7, v{ad}")
        I(f"s_sub_u32 s{sNwin}, s{sNW}, s{sW0}")
        I(f"s_min_i32 s{sNwin}, s{sNwin}, {WIN}")
        L(f"{name}_lloop{lbl}")
        I(f"v_cmpx_lt_i32 vcc, v{lo}, v{hi}")
        I(f"s_cbranch_execz {name}_ldone{lbl}")
        I(f"ds_write_b8 v{ad}, v{vR16} offset:{P2_LST}")
        I(f"v_add_u32 v{lo}, 4, v{lo}")
        I(f"v_add_u32 v{ad}, 4, v{ad}")
        I(f"s_branch {name}_lloop{lbl}")
        L(f"{name}_ldone{lbl}")
        I("s_mov_b64 exec, -1")
        for j in range(NT):
            I(f"ds_read_u8 v{vTL+2*j}, v{vLrd} offset:{P2_LST+64*j}")
        for j, s in enumerate((TS0, TS1)):
            I(f"s_sub_i32 s{sT0}, s{sNwin}, {64*j}")
            I(f"v_cmp_gt_i32_e64 {s.mask}, s{sT0}, v{vLane}")
        I(f"v_add_u32 v{vT+3}, s{sW0}, v{vLane}")
        I("s_waitcnt lgkmcnt(0)")
        for j in range(NT):
            I(f"ds_bpermute_b32 v{vTL+2*j}, v{vTL+2*j}, v{vD}")
        I("s_waitcnt lgkmcnt(0)")
        LG.q = []
        for j in range(NT):
            I(f"v_add_lshl_u32 v{vTL+2*j}, v{vTL+2*j}, v{vT+3}, 3")
        for j, s in enumerate((TS0, TS1)):
            I(f"s_mov_b64 exec, {s.mask}")
            I(f"buffer_load_dwordx2 {vr(vTL+2*j,2)}, v{vTL+2*j}, s[{sWS}:{sWS+3}], s{sTX} offen offset:{512*j} {RLF}")
            VM.add(f'TX{j}')
        I("s_mov_b64 exec, -1")
    def tails_setup(flag=True, lbl="a"):
        I("s_mov_b64 exec, -1")
        cell_counts(0); cell_counts(1)
        a, b = vT, vT + 1
        I(f"s_mov_b32 s38, 0x0f0f0f0f")
        I(f"s_mov_b32 s39, 0x0f0f0f0f")
        if TWO:
            I("s_nop 1")
            I(f"v_mov_b32_dpp v{b}, v{vCM} row_shl:4 row_mask:0xf bank_mask:0xf bound_ctrl:0")
            I(f"v_cndmask_b32_e64 v{a}, v{vCM+1}, v{b}, s[38:39]")
        else:
            I(f"v_cndmask_b32_e64 v{a}, v{vCM+1}, v{vCM}, s[38:39]")
        I("s_nop 1")
        I(f"v_mov_b32_dpp v{b}, v{a} quad_perm:[0,0,2,2] row_mask:0xf bank_mask:0xf")
        I(f"v_mov_b32_dpp v{vCnt}, v{a} quad_perm:[1,1,3,3] row_mask:0xf bank_mask:0xf")
        I(f"v_cmp_eq_u32 vcc, 0, v{vK}")
        I(f"v_add_u32 v{vD}, v{b}, v{vD}")
        I(f"v_subrev_u32 v{vCnt}, {HC}, v{vCnt}")
        I(f"v_max_i32 v{vCnt}, 0, v{vCnt}")
        I(f"v_cndmask_b32 v{vPre}, 0, v{vCnt}, vcc")
        wave_scan(vPre)
        I("s_nop 0")
        I(f"v_readlane_b32 s{sNW}, v{vPre}, 63")
        I(f"v_sub_u32 v{vPre}, v{vPre}, v{vCnt}")
        I(f"v_sub_u32 v{vD}, v{vD}, v{vPre}")
        tails_addr(lbl)
        if flag: moreflag(lbl)
    def gread(s, par):
        gs = vGS + 8*par
        I(f"s_mov_b64 exec, {s.mask}")
        I(f"v_lshlrev_b32 v{gs+6}, 1, v{s.x}")
        I(f"ds_read_b128 {vr(gs,4)}, v{gs+6} offset:{P2_GA}")
        I(f"ds_read_b64 {vr(gs+4,2)}, v{s.x} offset:{P2_GB}")
        LG.add(f'GRa{s.tag}'); LG.add(f'GRb{s.tag}')
    def sbody(s, par, uid=""):
        gs = vGS + 8*par
        rk, md, l8, y = s.rk, s.md, s.x, s.y
        c1, c2, c3, c12 = vT+4, vT+5, vT+6, vT+7
        q = vT + 6
        I(f"s_mov_b64 exec, {s.mask}")
        if s.ytag: VM.wait(s.ytag)
        if s.yhi:
            I(f"v_and_b32 v{c1}, 0xffff0000, v{y}")
        else:
            I(f"v_lshlrev_b32 v{c1}, 16, v{y}")
        I(f"v_mul_f32 v{c1}, 0.15915494, v{c1}")
        I(f"v_fract_f32 v{c1}, v{c1}")
        I(f"v_cos_f32 v{c1}, v{c1}")
        I("s_nop 0")
        I(f"v_add_f32 v{q}, v{c1}, v{c1}")
        I(f"v_fma_f32 v{c2}, v{q}, v{c1}, -1.0")
        I(f"v_fma_f32 v{c3}, v{q}, v{c2}, -v{c1}")
        I(f"v_cvt_pk_bf16_f32 v{c12}, v{c1}, v{c2}")
        I(f"v_cvt_pk_bf16_f32 v{c3}, 0, v{c3}")
        LG.wait(f'R{s.tag}')
        LG.wait(f'GRb{s.tag}')
        for d in range(4):
            I(f"v_dot2_f32_bf16 v{gs+d}, v{gs+d}, v{c12}, 0")
        I(f"v_lshlrev_b32 v{c1}, 16, v{gs+4}")
        I(f"v_and_b32 v{gs+4}, 0xffff0000, v{gs+4}")
        I(f"v_lshlrev_b32 v{c2}, 16, v{gs+5}")
        I(f"v_and_b32 v{gs+5}, 0xffff0000, v{gs+5}")
        for d, u in enumerate((c1, gs+4, c2, gs+5)):
            I(f"v_fmac_f32 v{gs+d}, v{u}, v{c3}")
        VM.wait(f'G{s.tag}')
        I("s_mov_b64 exec, -1")
        I(f"v_mfma_f32_4x4x4_16b_bf16 {vr(vT,4)}, {vr(vWD,2)}, {vr(md,2)}, 0")
        I(f"s_mov_b64 exec, {s.mask}")
        I(f"v_min_u32 v{gs+7}, {CAPE}, v{rk}")
        I(f"v_cmp_le_u32 vcc, {CAPE}, v{rk}")
        I(f"v_mad_u32_u24 v{gs+7}, v{gs+7}, s{sRS}, v{l8}")
        I("s_nop 0")
        for d in range(4):
            I(f"v_mul_f32 v{vT+d}, v{vT+d}, v{gs+d}")
        I(f"v_cvt_pk_bf16_f32 v{md}, v{vT}, v{vT+1}")
        I(f"v_cvt_pk_bf16_f32 v{md+1}, v{vT+2}, v{vT+3}")
        I(f"ds_write_b64 v{gs+7}, {vr(md,2)} offset:{P2_PAY}")
        LG.add(f'W{s.tag}')
        I(f"s_cbranch_vccz {name}_noovf{s.tag}{uid}")
        I("s_mov_b64 exec, vcc")
        I(f"v_lshlrev_b32 v{gs+6}, 1, v{l8}")
        for d in range(4):
            I(f"ds_add_f32 v{gs+6}, v{vT+d} offset:{P2_OVF+4*d}")
        I("s_waitcnt lgkmcnt(0)")
        L(f"{name}_noovf{s.tag}{uid}")
    def wd_setup():
        for d in range(4):
            I(f"s_mov_b32 exec_lo, {0x11111111 << d:#x}")
            I(f"s_mov_b32 exec_hi, {0x11111111 << d:#x}")
            I(f"v_mov_b32 v{vWD}, s{sWDP+2*d}")
            I(f"v_mov_b32 v{vWD+1}, s{sWDP+2*d+1}")
        I("s_mov_b64 exec, -1")
    def reduce_(uid):
        I("s_mov_b64 exec, -1")
        I(f"v_mov_b32 v{vT+4}, {P2_FLAG}")
        I(f"v_add_u32 v{vT+6}, {P2_PAY:#x}, v{vE8}")
        LG.wait_all()
        VM.wait_all()
        stamp(SV, 8) if not uid else None
        I("s_barrier")
        stamp(SV, 9) if not uid else None
        I(f"ds_read_b32 v{vT+5}, v{vT+4}")
        I(f"s_cmp_ge_u32 s{sWave}, 10")
        I(f"s_cbranch_scc1 {name}_nored{uid}")
        X = 24
        A = [92, 96, 100, 104]
        u = RS // 512
        NR = (CAPE + 1) // 2
        for k in range(NR):
            I(f"ds_read2st64_b64 {vr(X+4*k,4)}, v{vT+6} offset0:{2*k*u} offset1:{(2*k+1)*u}")
        for r in range(CAPE):
            k = r // 2
            if r % 2 == 0:
                I(f"s_waitcnt lgkmcnt({NR-1-k})")
            a = A[r % 4]
            c = vr(vAcc, 4) if r == 0 else ("0" if r < 4 else vr(a, 4))
            I(f"v_mfma_f32_4x4x4_16b_bf16 {vr(a,4)}, {vr(vID,2)}, {vr(X+4*k+2*(r%2),2)}, {c}")
        I("s_nop 4")
        I(f"v_pk_add_f32 {vr(A[1],2)}, {vr(A[1],2)}, {vr(A[2],2)}")
        I(f"v_pk_add_f32 {vr(A[1]+2,2)}, {vr(A[1]+2,2)}, {vr(A[2]+2,2)}")
        I(f"v_pk_add_f32 {vr(A[0],2)}, {vr(A[0],2)}, {vr(A[3],2)}")
        I(f"v_pk_add_f32 {vr(A[0]+2,2)}, {vr(A[0]+2,2)}, {vr(A[3]+2,2)}")
        I(f"v_pk_add_f32 {vr(vAcc,2)}, {vr(A[0],2)}, {vr(A[1],2)}")
        I(f"v_pk_add_f32 {vr(vAcc+2,2)}, {vr(A[0]+2,2)}, {vr(A[1]+2,2)}")
        L(f"{name}_nored{uid}")
        I("s_waitcnt lgkmcnt(0)")
        I(f"v_readfirstlane_b32 s{sMore}, v{vT+5}")
        I(f"s_add_u32 s{sW0}, s{sW0}, {WIN}")
    def moreflag(uid):
        I(f"s_add_u32 s{sT0}, s{sW0}, {WIN}")
        I(f"s_cmp_gt_u32 s{sNW}, s{sT0}")
        I(f"s_cbranch_scc0 {name}_nomore{uid}")
        I(f"v_mov_b32 v{vT+4}, {P2_FLAG}")
        I(f"v_mov_b32 v{vT+5}, s{sT0}")
        I(f"ds_write_b32 v{vT+4}, v{vT+5}")
        L(f"{name}_nomore{uid}")
    def tables():
        I(f"s_cmp_ge_u32 s{sWave}, 10")
        I(f"s_cbranch_scc1 {name}_notab")
        save = list(VM.q)
        I("s_mov_b64 exec, -1")
        VM.wait('DI')
        I(f"ds_write_b16 v{vTa}, v{vW} offset:{P2_GA}")
        I(f"ds_write_b16_d16_hi v{vTa}, v{vW} offset:{P2_GA + 16}")
        for g in range(4):
            I(f"ds_read_b128 {vr(32+4*g,4)}, v{vTr} offset:{P2_GA + 64*g}")
        I("s_waitcnt lgkmcnt(0)")
        edge_tables_mf(vDist, sC, 32, 104, 60, 48, vGAl, vGBl, 100, 101, 102, [26, 27], 90)
        I(f"s_mov_b64 exec, s[{sEM}:{sEM+1}]")
        I(f"ds_write_b128 v{vT+4}, {vr(vGAl,4)} offset:{P2_GA}")
        I(f"ds_write_b64 v{vE8}, {vr(vGBl,2)} offset:{P2_GB}")
        I("s_mov_b64 exec, -1")
        I(f"v_mov_b32 v{vGate}, v{vGBl+2}")
        I(f"v_mov_b32 v{vGate+1}, v{vGBl+3}")
        VM.q = save
        L(f"{name}_notab")
    def const_setup():
        I(f"s_load_dwordx8 s[{sRAW}:{sRAW+7}], s[{sPD}:{sPD+1}], 0")
        I(f"s_load_dwordx8 s[{sRAW+8}:{sRAW+15}], s[{sPD+2}:{sPD+3}], 0")
        I(f"s_mov_b32 s{sTX}, {TG:#x}")
        I(f"s_movk_i32 s{sRS}, {RS}")
        I(f"s_mov_b32 s{sW0}, 0")
    def const_pack():
        for (dst, raw) in ((sWDP, sRAW), (sWUP, sRAW + 8)):
            for dd in range(2):
                I(f"s_pack_ll_b32_b16 s{dst+4*dd+0}, s{raw+dd}, s{raw+2+dd}")
                I(f"s_pack_ll_b32_b16 s{dst+4*dd+1}, s{raw+4+dd}, s{raw+6+dd}")
                I(f"s_pack_hh_b32_b16 s{dst+4*dd+2}, s{raw+dd}, s{raw+2+dd}")
                I(f"s_pack_hh_b32_b16 s{dst+4*dd+3}, s{raw+4+dd}, s{raw+6+dd}")
    stamp(SV, 2)
    def ugather(h):
        s = slots[h]
        VM.wait(s.xtag)
        head_mask(h, s.mask)
        gather(s, GLU)
    for h in range(UPRE):
        ugather(h)
    tables()
    stamp(SV, 3)
    HS = list(range(NU, NH))
    def AK(h): return 28 + 2 * h
    def RH(h): return 29 + 2 * h
    DP = [48, 50, 52, 58, 60, 62, 64, 66, 68, 70]
    def om(i): return f"s[{72+2*i}:{73+2*i}]"
    vOV = 56
    I(f"v_mov_b32 v{vOV}, {P2_KC + 4 * NKEY}")
    for i, h in enumerate(HS):
        x = hx(h)
        y, hi_ = hy(h)
        I("s_mov_b64 exec, -1")
        VM.wait(hxtag(h))
        cell_counts(hgw(h)[0])
        I(f"v_lshrrev_b32 v{AK(h)}, {13 + KSH - 2}, v{x}")
        I(f"v_cmp_lt_i32_e64 {msk(h)}, {HSTEP*hgw(h)[1]}, v{vCC+hgw(h)[0]}")
        I(f"v_and_b32 v{AK(h)}, 0x7fc, v{AK(h)}")
        I(f"v_mov_b32 v{DP[i]}, v{x}")
        I(f"s_mov_b64 exec, {msk(h)}")
        I(f"ds_add_rtn_u32 v{RH(h)}, v{AK(h)}, v{vOne} offset:{P2_KC}")
        if hi_: I(f"v_lshrrev_b32 v{DP[i]+1}, 16, v{y}")
        else: I(f"v_mov_b32 v{DP[i]+1}, v{y}")
    stamp(SV, 4)
    for i, h in enumerate(HS):
        I(f"s_mov_b64 exec, {msk(h)}")
        I(f"s_waitcnt lgkmcnt({min(15, len(HS) - 1 - i)})")
        I(f"v_cmp_le_u32_e64 {om(i)}, {KCAP}, v{RH(h)}")
        I(f"v_lshlrev_b32 v{RH(h)}, 3, v{RH(h)}")
        I(f"v_lshl_add_u32 v{AK(h)}, v{AK(h)}, 7, v{RH(h)}")
    I(f"s_mov_b64 s[{sOM}:{sOM+1}], {om(0)}")
    for i in range(1, len(HS)):
        I(f"s_or_b64 s[{sOM}:{sOM+1}], s[{sOM}:{sOM+1}], {om(i)}")
    I(f"s_cbranch_scc0 {name}_nokov")
    for i, h in enumerate(HS):
        I(f"s_mov_b64 exec, {om(i)}")
        I(f"ds_add_rtn_u32 v{RH(h)}, v{vOV}, v{vOne}")
    for i, h in enumerate(HS):
        I(f"s_mov_b64 exec, {om(i)}")
        I(f"s_waitcnt lgkmcnt({min(15, len(HS) - 1 - i)})")
        I(f"v_min_u32 v{RH(h)}, {NOV}, v{RH(h)}")
        I(f"v_lshlrev_b32 v{RH(h)}, 3, v{RH(h)}")
        I(f"v_add_u32 v{AK(h)}, {NKEY * KCAP * 8}, v{RH(h)}")
    L(f"{name}_nokov")
    for i, h in enumerate(HS):
        I(f"s_mov_b64 exec, {msk(h)}")
        I(f"ds_write_b64 v{AK(h)}, {vr(DP[i],2)} offset:{P2_PAY}")
    I("s_mov_b64 exec, -1")
    const_setup()
    for h in range(UPRE, NU):
        ugather(h)
    I("s_mov_b64 exec, -1")
    I(f"s_lshl_b32 s90, s{sWave}, 9")
    I(f"s_add_u32 s90, s90, {P2_PAY}")
    I(f"v_lshl_add_u32 v{vXa}, v{vLane}, 3, s90")
    I(f"v_add_u32 v{vXb}, 65536, v{vXa}")
    I(f"s_lshl_b32 s90, s{sWave}, 2")
    I(f"v_lshl_add_u32 v{vCa}, v{vLane}, 6, s90")
    I(f"v_min_u32 v{vCa}, {4 * NKEY}, v{vCa}")
    I("s_waitcnt lgkmcnt(0)")
    const_pack()
    stamp(SV, 5)
    I("s_barrier")
    stamp(SV, 6)
    I(f"ds_read_b32 v{vCa}, v{vCa} offset:{P2_KC}")
    for j, s in enumerate(SS):
        I(f"ds_read_b64 {vr(s.x,2)}, v{vXa if j < 8 else vXb} offset:{8192*(j % 8)}")
    I(f"s_waitcnt lgkmcnt({NSS})")
    for j in range(NSS):
        I(f"v_readlane_b32 s{sCN+j}, v{vCa}, {j}")
    I(f"s_lshl_b32 s90, s{sWave}, 6")
    I(f"s_cmp_gt_u32 s{sCN+10}, {NOV}")
    I(f"s_cbranch_scc1 {name}_slow")
    I(f"s_sub_i32 s{sCN+10}, s{sCN+10}, s90")
    for j, s in enumerate(SS):
        I(f"v_cmp_gt_i32_e64 {s.mask}, s{sCN+j}, v{vLane}")
    for j in range(G0N):
        I(f"s_waitcnt lgkmcnt({NSS - 1 - j})")
        gather(SS[j])
    I("s_mov_b64 exec, -1")
    for i in range(4):
        I(f"v_mov_b32 v{vT+8+i}, 0")
    I(f"v_lshrrev_b32 v{vT}, 5, v{vLane}")
    I(f"v_and_b32 v{vT+1}, 31, v{vLane}")
    I(f"v_lshlrev_b32 v{vT}, 13, v{vT}")
    I(f"v_lshl_add_u32 v{vT}, v{vT+1}, 4, v{vT}")
    I(f"s_lshl_b32 s90, s{sWave}, 9")
    I(f"s_add_u32 s90, s90, {P2_PAY}")
    I(f"v_add_u32 v{vT}, s90, v{vT}")
    I(f"v_add_u32 v{vT+2}, 65536, v{vT}")
    I("s_waitcnt lgkmcnt(0)")
    for k in range(6):
        if k == 5:
            I("s_mov_b32 exec_hi, 0")
        I(f"ds_write_b128 v{vT if k < 4 else vT+2}, {vr(vT+8,4)} offset:{16384*(k % 4)}")
    wd_setup()
    LG.q = []
    gq = SS[G0N:]
    NP = NW - 1
    I("s_waitcnt lgkmcnt(0)")
    stamp(SV, 7)
    I("s_barrier")
    assert NU + G0N >= 2
    for s in slots[:2]:
        rank(s)
    gread(slots[0], 0)
    assert TPG + 3 <= NW - 1 and TPOS < TPG
    for i in range(NP):
        s = slots[i]
        for _ in range(GPS[i] if i < len(GPS) else 1):
            if gq: gather(gq.pop(0))
        if TPOS == i: tails_setup()
        if MPOS == i:
            I(f"s_mov_b64 exec, s[{sEM}:{sEM+1}]")
            I(first['M']); VM.add('M')
        if i == TPG: gather(TS0, GLU)
        if i == TPG + 1:
            gather(TS1, GLU); rank(TS1)
        if i + 2 < NP:
            rank(slots[i + 2])
        if i + 1 < NP:
            gread(slots[i + 1], (i + 1) % 2)
        sbody(s, i % 2)
    assert not gq
    I(f"s_cmp_eq_u64 {TS1.mask}, 0")
    I(f"s_cbranch_scc1 {name}_sdone")
    gread(TS1, NP % 2)
    sbody(TS1, NP % 2)
    L(f"{name}_sdone")
    reduce_("")
    I(f"s_cmp_lg_u32 s{sMore}, s{sW0}")
    I(f"s_cbranch_scc1 {name}_final")
    L(f"{name}_round")
    I("s_waitcnt vmcnt(0)")
    VM.q = []; LG.q = []
    I("s_barrier")
    for i in range(4):
        I(f"v_mov_b32 v{vT+8+i}, 0")
    I(f"v_lshlrev_b32 v{vT+4}, 4, v0")
    I(f"v_cmp_gt_u32 vcc, 640, v0")
    I("s_mov_b64 exec, vcc")
    I(f"ds_write_b32 v{vTid4}, v{vT+8} offset:{P2_CNT}")
    I("s_mov_b64 exec, -1")
    zero_fill(vT + 8, vT + 4, vT + 2, vT + 3)
    tails_addr("b")
    I("s_waitcnt lgkmcnt(0)")
    I("s_barrier")
    moreflag("b")
    for s in (TS0, TS1):
        gather(s, GLU); rank(s)
    for k, s in enumerate((TS0, TS1)):
        gread(s, k)
        sbody(s, k, "b")
    reduce_("b")
    I(f"s_cmp_lg_u32 s{sMore}, s{sW0}")
    I(f"s_cbranch_scc0 {name}_round")
    L(f"{name}_final")
    I(f"s_cmp_ge_u32 s{sWave}, 10")
    I(f"s_cbranch_scc1 {name}_fin2")
    f = vGS
    I(f"v_lshlrev_b32 v{vT}, 4, v0")
    I(f"ds_read_b128 {vr(f,4)}, v{vT} offset:{P2_OVF}")
    I("s_waitcnt vmcnt(0) lgkmcnt(0)")
    for d in range(4):
        I(f"v_add_f32 v{vAcc+d}, v{vAcc+d}, v{f+d}")
    I(f"v_cvt_pk_bf16_f32 v{f}, v{vAcc}, v{vAcc+1}")
    I(f"v_cvt_pk_bf16_f32 v{f+1}, v{vAcc+2}, v{vAcc+3}")
    for d in range(4):
        I(f"v_dot2_f32_bf16 v{f+2+d}, v{f}, s{sWUP+2*d}, 0")
    for d in range(4):
        I(f"v_dot2c_f32_bf16 v{f+2+d}, s{sWUP+2*d+1}, v{f+1}")
    I("s_nop 2")
    I(f"v_cvt_pk_bf16_f32 v{f}, v{f+2}, v{f+3}")
    I(f"v_cvt_pk_bf16_f32 v{f+1}, v{f+4}, v{f+5}")
    I(f"v_lshlrev_b32 v{f+2}, 16, v{f}")
    I(f"v_and_b32 v{f+3}, 0xffff0000, v{f}")
    I(f"v_lshlrev_b32 v{f+4}, 16, v{f+1}")
    I(f"v_and_b32 v{f+5}, 0xffff0000, v{f+1}")
    I(f"v_lshlrev_b32 v{f+6}, 16, v{vGate}")
    I(f"v_and_b32 v{f+7}, 0xffff0000, v{vGate}")
    I(f"v_lshlrev_b32 v{f+8}, 16, v{vGate+1}")
    I(f"v_and_b32 v{f+9}, 0xffff0000, v{vGate+1}")
    for d in range(4):
        I(f"v_mul_f32 v{f+2+d}, v{f+2+d}, v{f+6+d}")
    I(f"v_cvt_pk_bf16_f32 v{f}, v{f+2}, v{f+3}")
    I(f"v_cvt_pk_bf16_f32 v{f+1}, v{f+4}, v{f+5}")
    I(f"v_lshlrev_b32 v{f+2}, 16, v{f}")
    I(f"v_and_b32 v{f+3}, 0xffff0000, v{f}")
    I(f"v_lshlrev_b32 v{f+4}, 16, v{f+1}")
    I(f"v_and_b32 v{f+5}, 0xffff0000, v{f+1}")
    I(f"v_lshlrev_b32 v{f+6}, 16, v{vM}")
    I(f"v_and_b32 v{f+7}, 0xffff0000, v{vM}")
    I(f"v_lshlrev_b32 v{f+8}, 16, v{vM+1}")
    I(f"v_and_b32 v{f+9}, 0xffff0000, v{vM+1}")
    for d in range(4):
        I(f"v_add_f32 v{f+2+d}, v{f+2+d}, v{f+6+d}")
    I(f"v_cvt_pk_bf16_f32 v{f}, v{f+2}, v{f+3}")
    I(f"v_cvt_pk_bf16_f32 v{f+1}, v{f+4}, v{f+5}")
    I(f"buffer_store_dwordx2 {vr(f,2)}, v{vE8}, s[{sOUT}:{sOUT+3}], 0 offen")
    L(f"{name}_fin2")
    stamp(SV, 10)
    if TS:
        I("s_waitcnt vmcnt(0)")
    stamp(SV, 11)
    stamp_out(SV, 1, 100, 4)
    L(f"{name}_end")
    I("s_endpgm")
    L(f"{name}_slow")
    I("s_mov_b64 exec, -1")
    I("s_waitcnt vmcnt(0) lgkmcnt(0)")
    VM.q = []; LG.q = []
    I(f"v_lshrrev_b32 v{vT}, 6, v0")
    head_addr(vT + 5, vT + 1, vT + 6, 90)
    I(f"v_add_u32 v{vT+7}, 0x80000, v{vT+5}")
    I(f"buffer_load_dwordx4 {vr(vH,4)}, v{vT+5}, s[{sWS}:{sWS+3}], 0 offen")
    I(f"buffer_load_dwordx4 {vr(vH+4,4)}, v{vT+5}, s[{sWS}:{sWS+3}], 0 offen offset:{L1OFF}")
    I(f"buffer_load_dwordx4 {vr(vH+8,4)}, v{vT+7}, s[{sWS}:{sWS+3}], 0 offen")
    I(f"buffer_load_dwordx4 {vr(vH+12,4)}, v{vT+7}, s[{sWS}:{sWS+3}], 0 offen offset:{L1OFF}")
    I("s_barrier")
    for i in range(4):
        I(f"v_mov_b32 v{vT+8+i}, 0")
    I(f"v_lshlrev_b32 v{vT+4}, 4, v0")
    zero_fill(vT + 8, vT + 4, vT + 2, vT + 3)
    wd_setup()
    I("s_waitcnt vmcnt(0) lgkmcnt(0)")
    I("s_barrier")
    done_cc.clear()
    for h in range(NH):
        s = Slot(f'Z{h}', hx(h), hy(h)[0], hy(h)[1], None, None, vMD + 2*h, vRK + h % 4, msk(h))
        head_mask(h, s.mask)
        gather(s, GLU)
        rank(s)
        gread(s, h % 2)
        sbody(s, h % 2, "z")
    tails_setup(lbl="z")
    for k, s in enumerate((TS0, TS1)):
        gather(s, GLU); rank(s)
        gread(s, k)
        sbody(s, k, "z")
    I(f"s_branch {name}_sdone")

def desc(name, vgpr, sgpr=102):
    acc = (vgpr + 3) // 4 * 4
    e(f".amdhsa_kernel {name}")
    e(f"  .amdhsa_next_free_vgpr {vgpr}")
    e(f"  .amdhsa_next_free_sgpr {sgpr}")
    e(f"  .amdhsa_accum_offset {acc}")
    e("  .amdhsa_group_segment_fixed_size 0")
    e("  .amdhsa_kernarg_size 112")
    e("  .amdhsa_user_sgpr_count 2")
    e("  .amdhsa_user_sgpr_kernarg_segment_ptr 1")
    e("  .amdhsa_system_sgpr_workgroup_id_x 1")
    e(".end_amdhsa_kernel")

K1 = "gs_bin_kernel"
K2 = "gather_scatter__molecular_angular_gemnet__graph_kernel"

def main(path):
    e("; GemNet triplet gather/scatter: pass 1 bins triplets by output edge block, pass 2 reduces per block")
    e(f"; @launch kernel={K1} grid=({NB},1,1) block=(1024,1,1) lds={P1_LDS}")
    e(f"; @launch kernel={K2} grid=({NB},1,1) block=(1024,1,1) lds={P2_LDS}")
    e('.amdgcn_target "amdgcn-amd-amdhsa--gfx950"')
    e(".text")
    e(f".globl {K1}")
    e(f".globl {K2}")
    (p1two if TWO else p1)(K1)
    p2(K2)
    e('.section .rodata,"a"')
    e(".p2align 6")
    desc(K1, 108)
    e(".p2align 6")
    desc(K2, 128)
    open(path, "w").write("\n".join(x for x in out if x is not None) + "\n")
    print("P1_LDS", P1_LDS, "P2_LDS", P2_LDS, file=sys.stderr)

if __name__ == "__main__":
    main(sys.argv[1] if len(sys.argv) > 1 else "gather_scatter__molecular_angular_gemnet__graph.s")
```
